```python
import torch

def _softmax(x, axis=-1):
    return torch.softmax(x, dim=axis)
def _gelu(x):
    return torch.nn.functional.gelu(x, approximate="tanh")
def _silu(x):
    return torch.nn.functional.silu(x)
def _sigmoid(x):
    return torch.sigmoid(x)
def _layernorm(x, axis=-1, eps=1e-5):
    m = x.mean(dim=axis, keepdim=True)
    v = x.var(dim=axis, keepdim=True, unbiased=False)
    return (x - m) / torch.sqrt(v + eps)
def _scatter_add(tgt, idx, src, axis=0):
    return tgt.clone().index_add_(axis, idx, src)
def _segment_sum(src, seg, n):
    out = torch.zeros((n,) + src.shape[1:], dtype=src.dtype)
    return out.index_add_(0, seg, src)
def _pad(x, pw):
    flat = tuple(v for pair in reversed(pw) for v in pair)
    return torch.nn.functional.pad(x, flat)

kernel_name = 'standalone__kv_cache_quant_int4_int2_kv_with_per_channel_or_per_token_scales__decode'

def setup_inputs():

    _w = (lambda a: (lambda t: t.to(torch.bfloat16) if t.is_floating_point() else t)(torch.as_tensor(a)))
    B = 2
    Sq = 1
    Skv = 32768
    Hq = 32
    Hkv = 16
    Dh = 128
    bits = 2
    G = -1
    if G <= 0 or G >= Skv:
        G = max(1, Skv // 2)
    Skv = (Skv // G) * G
    ngk = Skv // G
    qmax = (1 << bits) - 1
    return {
        "q": _w((lambda *s: torch.randn(*s, dtype=torch.bfloat16) * 3.2)(B, Hq, Sq, Dh)),
        "qk": _w(torch.randint(0, qmax + 1, (B, Hkv, Skv, Dh)).to(torch.int32)),
        "qv": _w(torch.randint(0, qmax + 1, (B, Hkv, Skv, Dh)).to(torch.int32)),
        "k_scales": _w(torch.abs((lambda *s: torch.randn(*s, dtype=torch.bfloat16) * 3.2)(B, Hkv, ngk, Dh)) * 0.05 + 0.02),
        "k_zeros": _w((lambda *s: torch.randn(*s, dtype=torch.bfloat16) * 3.2)(B, Hkv, ngk, Dh) + float(qmax) / 2.0),
        "v_scales": _w(torch.abs((lambda *s: torch.randn(*s, dtype=torch.bfloat16) * 0.05)(B, Hkv, Skv, 1)) * 0.05 + 0.02),
        "v_zeros": _w((lambda *s: torch.randn(*s, dtype=torch.bfloat16) * 0.05)(B, Hkv, Skv, 1) + float(qmax) / 2.0),
    }

def reference(q, qk, qv, k_scales, k_zeros, v_scales, v_zeros):
    B, Hq, Sq, Dh = q.shape
    Hkv, Skv = qk.shape[1], qk.shape[2]
    ngk = k_scales.shape[2]
    G = Skv // ngk
    ks = (lambda x, n, axis: torch.repeat_interleave(x, n, dim=axis))(k_scales, G, axis=2)
    kz = (lambda x, n, axis: torch.repeat_interleave(x, n, dim=axis))(k_zeros, G, axis=2)
    k = ((lambda x, dt: x.to(dt))(qk, q.dtype) - kz) * ks
    v = ((lambda x, dt: x.to(dt))(qv, q.dtype) - v_zeros) * v_scales
    rep = Hq // Hkv
    if rep > 1:
        k = (lambda x, n, axis: torch.repeat_interleave(x, n, dim=axis))(k, rep, axis=1)
        v = (lambda x, n, axis: torch.repeat_interleave(x, n, dim=axis))(v, rep, axis=1)
    scale = float(Dh) ** -0.5
    logits = torch.einsum("bhqd,bhkd->bhqk", q, k) * scale
    p = _softmax(logits, axis=-1)
    o = torch.einsum("bhqk,bhkd->bhqd", p, v)
    return o
```

```python
import re

TRANS = ("v_exp_f32", "v_log_f32", "v_rcp_f32", "v_rsq_f32", "v_sqrt_f32", "v_sin_f32", "v_cos_f32")


def regs_of(tok):
    tok = tok.strip()
    tok = tok.lstrip("-")
    m = re.fullmatch(r"abs\((.*)\)", tok)
    if m:
        tok = m.group(1)
    m = re.fullmatch(r"([vsa])(\d+)", tok)
    if m:
        return {(m.group(1), int(m.group(2)))}
    m = re.fullmatch(r"([vsa])\[(\d+):(\d+)\]", tok)
    if m:
        return {(m.group(1), i) for i in range(int(m.group(2)), int(m.group(3)) + 1)}
    if tok in ("vcc", "exec", "m0", "scc"):
        return {(tok, 0)}
    if tok in ("vcc_lo", "vcc_hi"):
        return {("vcc", 0)}
    if tok in ("exec_lo", "exec_hi"):
        return {("exec", 0)}
    return set()


class Ins:
    def __init__(self, text):
        self.text = text
        t = text.split(";")[0].strip()
        self.is_label = t.endswith(":")
        self.is_dir = t.startswith(".") or t == ""
        self.op = ""
        self.dst = set()
        self.src = set()
        self.srcs_list = []
        self.kind = "none"
        self.states = 0
        if self.is_label or self.is_dir:
            return
        parts = t.split(None, 1)
        op = parts[0]
        self.op = op
        rest = parts[1] if len(parts) > 1 else ""
        ops = []
        depth = 0
        cur = ""
        for ch in rest:
            if ch in "[(":
                depth += 1
            if ch in "])":
                depth -= 1
            if ch == "," and depth == 0:
                ops.append(cur.strip())
                cur = ""
            else:
                cur += ch
        if cur.strip():
            ops.append(cur.strip())
        mods = ""
        if ops:
            last = ops[-1].split(None, 1)
            ops[-1] = last[0]
            mods = last[1] if len(last) > 1 else ""
        self.mods = mods
        self.states = 1
        if op == "s_nop":
            self.states = int(ops[0], 0) + 1
            self.kind = "salu"
            return
        self.dpp = bool(re.search(r"quad_perm|row_|wave_", mods)) or op.endswith("_dpp")
        R = [regs_of(o) for o in ops]
        if op.startswith("v_mfma"):
            self.kind = "mfma"
            self.dst = R[0]
            self.A, self.B, self.C = R[1], R[2], R[3]
            self.src = R[1] | R[2] | R[3]
            self.passes = 4 if "16x16x32" in op else (8 if "32x32x16" in op else 16)
        elif op.startswith("v_"):
            self.kind = "valu"
            if op.startswith("v_permlane") and "swap" in op:
                self.dst = R[0] | R[1]
                self.src = R[0] | R[1]
            elif op.startswith("v_add_co") or op.startswith("v_sub_co") or op.startswith("v_addc_co"):
                self.dst = R[0] | R[1]
                for r in R[2:]:
                    self.src |= r
            else:
                self.dst = R[0]
                for r in R[1:]:
                    self.src |= r
                if op.startswith("v_fmac") or op.startswith("v_dot2c") or self.dpp:
                    self.src |= R[0]
                if op.startswith("v_cndmask") and len(ops) == 3:
                    self.src |= {("vcc", 0)}
            self.srcs_list = R[1:]
        elif op.startswith("buffer_") or op.startswith("global_") or op.startswith("flat_"):
            self.kind = "vmem"
            if "load" in op and "lds" not in (op + " " + mods):
                self.dst = R[0]
                for r in R[1:]:
                    self.src |= r
            elif "atomic" in op and "sc0" in mods and op.startswith("global_"):
                self.dst = R[0]
                for r in R[1:]:
                    self.src |= r
            else:
                for r in R:
                    self.src |= r
            self.wide_store = ("store" in op) and (op.endswith("x4") or op.endswith("x3"))
            if self.wide_store:
                self.data = R[0] if op.startswith("buffer_") else R[1]
        elif op.startswith("ds_"):
            self.kind = "ds"
            if "read" in op or "permute" in op or "swizzle" in op:
                self.dst = R[0]
                for r in R[1:]:
                    self.src |= r
            else:
                for r in R:
                    self.src |= r
        elif op.startswith("s_"):
            self.kind = "salu"
            if op.startswith("s_cmp") or op.startswith("s_cbranch") or op in ("s_branch", "s_waitcnt", "s_barrier", "s_endpgm", "s_setprio", "s_sleep"):
                for r in R:
                    self.src |= r
            else:
                if R:
                    self.dst = R[0]
                for r in R[1:]:
                    self.src |= r
        else:
            raise ValueError("unknown instruction " + text)


def required(p, c):
    need = 0
    vd = {r for r in p.dst if r[0] in ("v", "a")}
    sd = {r for r in p.dst if r[0] in ("s", "vcc")}
    if p.kind == "valu":
        isdot = p.op.startswith("v_dot")
        if vd & c.src or (vd & c.dst and isdot):
            if c.kind == "valu":
                if getattr(c, "dpp", False) and (vd & c.src):
                    need = max(need, 2)
                if c.op.startswith("v_permlane"):
                    need = max(need, 2)
                if c.op.startswith("v_readlane") or c.op.startswith("v_readfirstlane"):
                    need = max(need, 1)
            if c.kind == "mfma":
                need = max(need, 2)
            if p.op in TRANS or p.op.replace("_e32", "") in TRANS:
                if not (c.op in TRANS):
                    need = max(need, 1)
            if isdot:
                if c.op == p.op and c.kind == "valu":
                    ab = set()
                    for r in c.srcs_list[:2]:
                        ab |= r
                    if vd & ab:
                        need = max(need, 3)
                else:
                    need = max(need, 3)
        if sd & c.src:
            if c.kind in ("valu", "mfma"):
                need = max(need, 4 if c.op.startswith("v_readlane") or c.op.startswith("v_writelane") else 2)
            if c.kind == "vmem":
                need = max(need, 5)
            if c.kind == "salu":
                need = max(need, 1)
        if ("exec", 0) in p.dst:
            need = max(need, 5)
    if p.kind == "mfma":
        tab_raw = {4: 8, 8: 12, 16: 20}[p.passes]
        tab_ov = {4: 6, 8: 10, 16: 18}[p.passes]
        tab_war = {4: 3, 8: 7, 16: 15}[p.passes]
        if c.kind == "mfma":
            if vd & (c.A | c.B):
                need = max(need, tab_raw)
            if vd & c.C:
                if not (c.C == vd and c.passes == p.passes):
                    need = max(need, tab_ov)
            if (vd & c.dst) and not (c.dst == vd and c.C == vd):
                need = max(need, tab_raw)
        else:
            if vd & (c.src | c.dst):
                need = max(need, tab_raw)
            if c.kind == "valu" and (p.C & c.dst):
                need = max(need, tab_war)
    if p.kind == "vmem" and getattr(p, "wide_store", False):
        if p.data & c.dst:
            need = max(need, 2 if c.kind == "valu" else 1)
    return need


class Asm:
    def __init__(self):
        self.ins = []

    def __call__(self, text):
        for line in text.split("\n"):
            self.ins.append(Ins("  " + line.strip() if not line.strip().endswith(":") and not line.strip().startswith(".") and not line.strip().startswith(";") else line.strip()))

    def pad(self):
        out = []
        n = 0
        for c in self.ins:
            if c.is_label or c.is_dir:
                out.append(c)
                continue
            need = 0
            dist = 0
            for p in reversed(out):
                if p.is_label or p.is_dir:
                    continue
                r = required(p, c)
                if r > dist:
                    need = max(need, r - dist)
                dist += p.states
                if dist > 24:
                    break
            if need > 0:
                out.append(Ins(f"  s_nop {need-1}"))
                n += 1
            out.append(c)
        self.ins = out
        return n

    def check_loop(self, label):
        idx = [i for i, x in enumerate(self.ins) if x.is_label and x.text.strip() == label + ":"][0]
        end = [i for i, x in enumerate(self.ins) if x.op.startswith("s_cbranch") or x.op == "s_branch"]
        end = [i for i in end if self.ins[i].text.split()[-1] == label][-1]
        body = [x for x in self.ins[idx:end + 1] if not (x.is_label or x.is_dir)]
        seq = body + body
        for j in range(len(body), len(seq)):
            c = seq[j]
            dist = 0
            for i in range(j - 1, -1, -1):
                p = seq[i]
                r = required(p, c)
                assert r <= dist, f"back-edge hazard in {label}: {p.text} -> {c.text} need {r} have {dist}"
                dist += p.states
                if dist > 24:
                    break

    def text(self):
        return "\n".join(x.text for x in self.ins) + "\n"
```

```python
import sys
from asmlib import Asm

KN = "standalone__kv_cache_quant_int4_int2_kv_with_per_channel_or_per_token_scales__decode"

HEADER = """; Kernarg layout for this problem (80 bytes, ptrs only, base s[0:1]):
"""


def gen(rot=0, policy="nt", stamp=False):
    NW = 16
    WB = 6144
    MLB = NW * WB
    LDS = MLB + 256
    a = Asm()
    OFF0, OFF1, ADA, ADZ, ADL, ADPW, MX, LANE = 0, 1, 2, 3, 4, 5, 6, 7
    AOP = 4
    KZ, KS, Q0, Q1 = 8, 12, 16, 18
    T0, U0 = 20, 24
    S, W, U, TT, KP = 32, 40, 42, 46, 47
    ZR, SR, TV, B, ACC, RING = 8, 16, 24, 32, 48, 64
    sSRD, sA, sB, sCNT, sMASK, sB0, sB1, sEXA, sSCALE, sLOG2E, sWBASE, sBH = 24, 28, 29, 30, 31, 32, 34, 36, 38, 39, 40, 41
    sROT, sLW = 42, 47
    P0, P1, P2, P3, P4, P5, P6, P7 = 32, 33, 34, 35, 36, 37, 38, 39

    a(f"{KN}_kernel:")
    a("s_cmp_ge_u32 s2, 256")
    a("s_cbranch_scc1 L_end")
    a("s_load_dwordx16 s[4:19], s[0:1], 0")
    a("s_load_dwordx4 s[20:23], s[0:1], 64")
    if stamp:
        a("s_memrealtime s[60:61]")
    a(f"v_lshrrev_b32 v{P0}, 6, v0")
    a(f"v_and_b32 v{LANE}, 63, v0")
    a(f"v_readfirstlane_b32 s3, v{P0}")
    a(f"v_lshlrev_b32 v{OFF0}, 4, v{LANE}")
    a(f"v_add_u32 v{OFF1}, 0x1000, v{OFF0}")
    a(f"s_lshr_b32 s{sBH}, s2, 3")
    a(f"s_mov_b32 s{sMASK}, 0xffff0000")
    a(f"s_mov_b32 s{sB0}, 0xaaaaaaaa")
    a(f"s_mov_b32 s{sB0+1}, 0xaaaaaaaa")
    a(f"s_mov_b32 s{sB1}, 0xcccccccc")
    a(f"s_mov_b32 s{sB1+1}, 0xcccccccc")
    a(f"s_mov_b32 s{sEXA}, 0x00f0000f")
    a(f"s_mov_b32 s{sEXA+1}, 0x00f0000f")
    a(f"s_mov_b32 s{sSCALE}, 0x3db504f3")
    a(f"s_mov_b32 s{sLOG2E}, 0x3fb8aa3b")
    a(f"s_mul_i32 s{sROT}, s2, {rot}")
    a(f"s_and_b32 s{sROT}, s{sROT}, 7")
    a(f"s_lshl_b32 s{sWBASE}, s2, 21")
    a("s_lshl_b32 s43, s3, 13")
    a(f"s_add_u32 s{sWBASE}, s{sWBASE}, s43")
    a(f"v_and_b32 v{P0}, 31, v{LANE}")
    a(f"v_lshlrev_b32 v{P0}, 3, v{P0}")
    a(f"s_lshl_b32 s43, s{sBH}, 9")
    a(f"v_add_u32 v{P1}, s43, v{P0}")
    a("s_bfe_u32 s44, s2, 0x10002")
    a("s_lshl_b32 s44, s44, 8")
    a("s_add_u32 s44, s44, s43")
    a(f"v_add_u32 v{P2}, s44, v{P0}")
    a(f"v_lshrrev_b32 v{P3}, 2, v{LANE}")
    a(f"s_lshl_b32 s45, s{sROT}, 1")
    a(f"v_add_u32 v{P3}, s45, v{P3}")
    a(f"v_and_b32 v{P3}, 15, v{P3}")
    a(f"v_lshlrev_b32 v{P3}, 9, v{P3}")
    a(f"v_and_b32 v{P4}, 3, v{LANE}")
    a(f"v_lshl_add_u32 v{P3}, v{P4}, 3, v{P3}")
    a("s_lshl_b32 s45, s2, 13")
    a("s_lshl_b32 s46, s3, 5")
    a("s_add_u32 s45, s45, s46")
    a(f"v_add_u32 v{P3}, s45, v{P3}")
    a(f"s_mul_i32 s{sLW}, s3, {WB}")
    a(f"v_lshlrev_b32 v{ADL}, 2, v{LANE}")
    a(f"v_add_u32 v{ADL}, s{sLW}, v{ADL}")
    a(f"v_bfe_u32 v{P5}, v{LANE}, 4, 2")
    a(f"v_lshlrev_b32 v{P5}, 5, v{P5}")
    a(f"v_bfe_u32 v{P6}, v{LANE}, 1, 1")
    a(f"v_lshl_add_u32 v{P5}, v{P6}, 7, v{P5}")
    a(f"v_and_b32 v{P6}, 1, v{LANE}")
    a(f"v_lshl_add_u32 v{P5}, v{P6}, 3, v{P5}")
    a(f"v_bfe_u32 v{P6}, v{LANE}, 3, 1")
    a(f"v_lshl_add_u32 v{P5}, v{P6}, 1, v{P5}")
    a(f"v_bfe_u32 v{P6}, v{LANE}, 2, 1")
    a(f"v_lshl_add_u32 v{P5}, v{P6}, 2, v{P5}")
    a(f"s_add_u32 s48, s{sLW}, 2048")
    a(f"v_add_u32 v{ADPW}, s48, v{P5}")
    a(f"v_lshrrev_b32 v{P5}, 5, v{LANE}")
    a(f"v_lshl_add_u32 v{P6}, v{P5}, 2, v{P4}")
    a(f"v_lshlrev_b32 v{P6}, 4, v{P6}")
    a(f"v_add_u32 v{ADA}, s48, v{P6}")
    a(f"v_lshlrev_b32 v{P5}, 6, v{P5}")
    a(f"s_add_u32 s48, s{sLW}, 4096")
    a(f"v_add_u32 v{ADZ}, s48, v{P5}")
    a(f"v_lshrrev_b32 v{P7}, 2, v{LANE}")
    a(f"v_lshlrev_b32 v{P7}, 7, v{P7}")
    a(f"v_lshl_add_u32 v{P7}, v{P4}, 3, v{P7}")
    a(f"v_add_u32 v{P7}, s48, v{P7}")
    a(f"v_mov_b32 v{MX}, 0xff800000")
    a("s_waitcnt lgkmcnt(0)")
    a(f"global_load_dwordx2 v[{Q0}:{Q0+1}], v{P1}, s[4:5]")
    a(f"global_load_dwordx2 v[{Q1}:{Q1+1}], v{P1}, s[4:5] offset:256")
    a(f"global_load_dwordx2 v[20:21], v{P2}, s[10:11]")
    a(f"global_load_dwordx2 v[22:23], v{P2}, s[12:13]")
    a(f"global_load_dwordx2 v[24:25], v{P3}, s[14:15]")
    a(f"global_load_dwordx2 v[26:27], v{P3}, s[16:17]")
    a(f"s_mov_b32 s{sSRD}, s6")
    a(f"s_and_b32 s{sSRD+1}, s7, 0xffff")
    a(f"s_mov_b32 s{sSRD+2}, 0x20000000")
    a(f"s_mov_b32 s{sSRD+3}, 0x00020000")
    a("s_and_b32 s9, s9, 0xffff")

    def set_offsets():
        a(f"s_lshl_b32 s{sA}, s{sROT}, 18")
        a(f"s_add_u32 s{sA}, s{sA}, s{sWBASE}")
        a(f"s_add_u32 s{sB}, s{sA}, 0x20000")
        a(f"s_add_u32 s{sROT}, s{sROT}, 1")
        a(f"s_and_b32 s{sROT}, s{sROT}, 7")

    def load(slot):
        r = RING + slot * 4
        u = slot & 7
        so = sA if slot < 8 else sB
        vo = OFF0 if u < 4 else OFF1
        a(f"buffer_load_dwordx4 v[{r}:{r+3}], v{vo}, s[{sSRD}:{sSRD+3}], s{so} offen offset:{(u&3)*1024} {policy}")

    set_offsets()
    for s in range(16):
        load(s)
    a("s_waitcnt vmcnt(16)")
    a(f"v_lshlrev_b32 v{KS}, 16, v20")
    a(f"v_and_b32 v{KS+1}, s{sMASK}, v20")
    a(f"v_lshlrev_b32 v{KS+2}, 16, v21")
    a(f"v_and_b32 v{KS+3}, s{sMASK}, v21")
    a(f"v_lshlrev_b32 v{KZ}, 16, v22")
    a(f"v_and_b32 v{KZ+1}, s{sMASK}, v22")
    a(f"v_lshlrev_b32 v{KZ+2}, 16, v23")
    a(f"v_and_b32 v{KZ+3}, s{sMASK}, v23")
    a("v_lshlrev_b32 v40, 16, v26")
    a("v_lshlrev_b32 v41, 16, v27")
    a(f"v_and_b32 v42, s{sMASK}, v26")
    a(f"v_and_b32 v43, s{sMASK}, v27")
    a("v_lshlrev_b32 v44, 16, v24")
    a("v_lshlrev_b32 v45, 16, v25")
    a(f"v_and_b32 v46, s{sMASK}, v24")
    a(f"v_and_b32 v47, s{sMASK}, v25")
    a(f"ds_write_b64 v{P7}, v[40:41]")
    a(f"ds_write_b64 v{P7}, v[42:43] offset:64")
    a(f"ds_write_b64 v{P7}, v[44:45] offset:32")
    a(f"ds_write_b64 v{P7}, v[46:47] offset:96")
    for i in range(16):
        a(f"v_mov_b32 v{ACC+i}, 0")

    a(f"s_mov_b32 s{sCNT}, 0")
    a("L_k:")
    a(f"s_cmp_eq_u32 s{sCNT}, 7")
    a(f"s_cselect_b32 s{sSRD}, s8, s{sSRD}")
    a(f"s_cselect_b32 s{sSRD+1}, s9, s{sSRD+1}")
    set_offsets()
    for st in range(4):
        for jl in range(4):
            slot = st * 4 + jl
            r = RING + slot * 4
            a("s_waitcnt vmcnt(15)")
            for e in range(4):
                a(f"v_cvt_f32_i32 v{T0+e}, v{r+e}")
            load(slot)
            a(f"v_pk_add_f32 v[{T0}:{T0+1}], v[{T0}:{T0+1}], v[{KZ}:{KZ+1}] neg_lo:[0,1] neg_hi:[0,1]")
            a(f"v_pk_add_f32 v[{T0+2}:{T0+3}], v[{T0+2}:{T0+3}], v[{KZ+2}:{KZ+3}] neg_lo:[0,1] neg_hi:[0,1]")
            a(f"v_cvt_pk_bf16_f32 v{U0}, v{T0}, v{T0+1}")
            a(f"v_cvt_pk_bf16_f32 v{U0+1}, v{T0+2}, v{T0+3}")
            a(f"v_lshlrev_b32 v{T0}, 16, v{U0}")
            a(f"v_and_b32 v{T0+1}, s{sMASK}, v{U0}")
            a(f"v_lshlrev_b32 v{T0+2}, 16, v{U0+1}")
            a(f"v_and_b32 v{T0+3}, s{sMASK}, v{U0+1}")
            a(f"v_pk_mul_f32 v[{T0}:{T0+1}], v[{T0}:{T0+1}], v[{KS}:{KS+1}]")
            a(f"v_pk_mul_f32 v[{T0+2}:{T0+3}], v[{T0+2}:{T0+3}], v[{KS+2}:{KS+3}]")
            a(f"v_cvt_pk_bf16_f32 v{U0}, v{T0}, v{T0+1}")
            a(f"v_cvt_pk_bf16_f32 v{U0+1}, v{T0+2}, v{T0+3}")
            s0, s1 = S + jl * 2, S + jl * 2 + 1
            a(f"v_dot2_f32_bf16 v{s0}, v{U0}, v{Q0}, 0")
            a(f"v_dot2_f32_bf16 v{s1}, v{U0}, v{Q1}, 0")
            a(f"v_dot2_f32_bf16 v{s0}, v{U0+1}, v{Q0+1}, v{s0}")
            a(f"v_dot2_f32_bf16 v{s1}, v{U0+1}, v{Q1+1}, v{s1}")
        for jl in range(4):
            s0, s1 = S + jl * 2, S + jl * 2 + 1
            a(f"v_permlane16_swap_b32 v{s0}, v{s1}")
        for jl in range(4):
            s0, s1 = S + jl * 2, S + jl * 2 + 1
            a(f"v_add_f32 v{s0}, v{s0}, v{s1}")
        a(f"v_add_f32_dpp v{W}, v{S}, v{S} row_mirror row_mask:0xf bank_mask:0x3")
        a(f"v_add_f32_dpp v{W+1}, v{S+4}, v{S+4} row_mirror row_mask:0xf bank_mask:0x3")
        a(f"v_add_f32_dpp v{W}, v{S+2}, v{S+2} row_mirror row_mask:0xf bank_mask:0xc")
        a(f"v_add_f32_dpp v{W+1}, v{S+6}, v{S+6} row_mirror row_mask:0xf bank_mask:0xc")
        a(f"v_add_f32_dpp v{U+st}, v{W}, v{W} row_half_mirror row_mask:0xf bank_mask:0x5")
        a(f"v_add_f32_dpp v{U+st}, v{W+1}, v{W+1} row_half_mirror row_mask:0xf bank_mask:0xa")
    a(f"v_cndmask_b32 v{TT}, v{U+1}, v{U}, s[{sB0}:{sB0+1}]")
    a(f"v_cndmask_b32 v{KP}, v{U}, v{U+1}, s[{sB0}:{sB0+1}]")
    a(f"v_cndmask_b32 v{S}, v{U+3}, v{U+2}, s[{sB0}:{sB0+1}]")
    a(f"v_cndmask_b32 v{S+1}, v{U+2}, v{U+3}, s[{sB0}:{sB0+1}]")
    a(f"v_add_f32_dpp v{W}, v{TT}, v{KP} quad_perm:[1,0,3,2] row_mask:0xf bank_mask:0xf")
    a(f"v_add_f32_dpp v{W+1}, v{S}, v{S+1} quad_perm:[1,0,3,2] row_mask:0xf bank_mask:0xf")
    a(f"v_cndmask_b32 v{TT}, v{W+1}, v{W}, s[{sB1}:{sB1+1}]")
    a(f"v_cndmask_b32 v{KP}, v{W}, v{W+1}, s[{sB1}:{sB1+1}]")
    a(f"v_add_f32_dpp v{W}, v{TT}, v{KP} quad_perm:[2,3,0,1] row_mask:0xf bank_mask:0xf")
    a(f"v_cvt_pk_bf16_f32 v{W}, v{W}, v{W}")
    a(f"v_lshlrev_b32 v{W}, 16, v{W}")
    a(f"v_mul_f32 v{W}, s{sSCALE}, v{W}")
    a(f"v_cvt_pk_bf16_f32 v{W}, v{W}, v{W}")
    a(f"v_lshlrev_b32 v{W}, 16, v{W}")
    a(f"v_max_f32 v{MX}, v{MX}, v{W}")
    a(f"ds_write_b32 v{ADL}, v{W}")
    a(f"v_add_u32 v{ADL}, 0x100, v{ADL}")
    a(f"s_add_u32 s{sCNT}, s{sCNT}, 1")
    a(f"s_cmp_lt_u32 s{sCNT}, 8")
    a("s_cbranch_scc1 L_k")

    LG = 8
    a(f"v_subrev_u32 v{ADL}, 0x800, v{ADL}")
    a("s_waitcnt lgkmcnt(0)")
    for n in range(8):
        a(f"ds_read_b32 v{LG+n}, v{ADL} offset:{n*256}")
    a(f"v_max_f32_dpp v{MX}, v{MX}, v{MX} quad_perm:[1,0,3,2] row_mask:0xf bank_mask:0xf")
    a(f"v_max_f32_dpp v{MX}, v{MX}, v{MX} quad_perm:[2,3,0,1] row_mask:0xf bank_mask:0xf")
    a(f"v_max_f32_dpp v{MX}, v{MX}, v{MX} row_half_mirror row_mask:0xf bank_mask:0xf")
    a(f"v_max_f32_dpp v{MX}, v{MX}, v{MX} row_mirror row_mask:0xf bank_mask:0xf")
    a(f"v_mov_b32 v16, v{MX}")
    a(f"v_permlane32_swap_b32 v{MX}, v16")
    a(f"v_max_f32 v{MX}, v{MX}, v16")
    a("s_waitcnt lgkmcnt(0)")
    for n in range(8):
        a(f"v_sub_f32 v{LG+n}, v{LG+n}, v{MX}")
    for n in range(8):
        a(f"v_mul_f32 v{LG+n}, s{sLOG2E}, v{LG+n}")
    for n in range(8):
        a(f"v_exp_f32 v{LG+n}, v{LG+n}")
    SM = 17
    a(f"v_add_f32 v{SM}, v{LG}, v{LG+1}")
    for n in range(2, 8):
        a(f"v_add_f32 v{SM}, v{SM}, v{LG+n}")
    for n in range(8):
        a(f"v_cvt_pk_bf16_f32 v{24+n}, v{LG+n}, v{LG+n}")
    for n in range(8):
        a(f"v_lshlrev_b32 v{24+n}, 16, v{24+n}")
    for n in range(8):
        a(f"v_sub_f32 v{24+n}, v{LG+n}, v{24+n}")
    for n in range(8):
        a(f"v_cvt_pk_bf16_f32 v{24+n}, v{LG+n}, v{24+n}")
    for n in range(8):
        a(f"ds_write_b16 v{ADPW}, v{24+n} offset:{n*256}")
        a(f"ds_write_b16_d16_hi v{ADPW}, v{24+n} offset:{n*256+16}")
    a(f"v_add_f32_dpp v{SM}, v{SM}, v{SM} quad_perm:[1,0,3,2] row_mask:0xf bank_mask:0xf")
    a(f"v_add_f32_dpp v{SM}, v{SM}, v{SM} quad_perm:[2,3,0,1] row_mask:0xf bank_mask:0xf")
    a(f"v_add_f32_dpp v{SM}, v{SM}, v{SM} row_half_mirror row_mask:0xf bank_mask:0xf")
    a(f"v_add_f32_dpp v{SM}, v{SM}, v{SM} row_mirror row_mask:0xf bank_mask:0xf")
    a(f"v_mov_b32 v16, v{SM}")
    a(f"v_permlane32_swap_b32 v{SM}, v16")
    a(f"v_add_f32 v{SM}, v{SM}, v16")
    a(f"v_bfe_u32 v16, v{LANE}, 4, 1")
    a("v_lshlrev_b32 v16, 6, v16")
    a("s_lshl_b32 s43, s3, 2")
    a(f"s_add_u32 s43, s43, {MLB}")
    a("v_add_u32 v16, s43, v16")
    a(f"ds_write_b32 v16, v{MX}")
    a(f"ds_write_b32 v16, v{SM} offset:128")
    for i in range(4):
        a(f"v_mov_b32 v{AOP+i}, 0")

    def v_body(with_loads):
        for gp in range(2):
            a(f"ds_read_b128 v[{ZR}:{ZR+3}], v{ADZ} offset:{gp*128}")
            a(f"ds_read_b128 v[{ZR+4}:{ZR+7}], v{ADZ} offset:{gp*128+16}")
            a(f"ds_read_b128 v[{SR}:{SR+3}], v{ADZ} offset:{gp*128+32}")
            a(f"ds_read_b128 v[{SR+4}:{SR+7}], v{ADZ} offset:{gp*128+48}")
            a(f"s_mov_b64 exec, s[{sEXA}:{sEXA+1}]")
            a(f"ds_read_b128 v[{AOP}:{AOP+3}], v{ADA} offset:{gp*128}")
            a("s_mov_b64 exec, -1")
            for jj in range(4):
                for k in range(2):
                    slot = gp * 8 + jj * 2 + k
                    r = RING + slot * 4
                    a(f"s_waitcnt vmcnt({15 if with_loads else 15 - slot})")
                    for e in range(4):
                        a(f"v_cvt_f32_i32 v{TV+2*e+k}, v{r+e}")
                    if with_loads:
                        load(slot)
                if jj == 0:
                    a("s_waitcnt lgkmcnt(0)")
                z = ZR + 2 * jj
                sc = SR + 2 * jj
                for e in range(4):
                    t = TV + 2 * e
                    a(f"v_pk_add_f32 v[{t}:{t+1}], v[{t}:{t+1}], v[{z}:{z+1}] neg_lo:[0,1] neg_hi:[0,1]")
                for e in range(4):
                    t = TV + 2 * e
                    a(f"v_cvt_pk_bf16_f32 v{B+4*e+jj}, v{t}, v{t+1}")
                for e in range(4):
                    t = TV + 2 * e
                    a(f"v_lshlrev_b32 v{t}, 16, v{B+4*e+jj}")
                    a(f"v_and_b32 v{t+1}, s{sMASK}, v{B+4*e+jj}")
                for e in range(4):
                    t = TV + 2 * e
                    a(f"v_pk_mul_f32 v[{t}:{t+1}], v[{t}:{t+1}], v[{sc}:{sc+1}]")
                for e in range(4):
                    t = TV + 2 * e
                    a(f"v_cvt_pk_bf16_f32 v{B+4*e+jj}, v{t}, v{t+1}")
            for e in range(4):
                a(f"v_mfma_f32_16x16x32_bf16 v[{ACC+4*e}:{ACC+4*e+3}], v[{AOP}:{AOP+3}], v[{B+4*e}:{B+4*e+3}], v[{ACC+4*e}:{ACC+4*e+3}]")
        a(f"v_add_u32 v{ADZ}, 0x100, v{ADZ}")
        a(f"v_add_u32 v{ADA}, 0x100, v{ADA}")

    a(f"s_mov_b32 s{sCNT}, 0")
    a("s_waitcnt lgkmcnt(0)")
    a("L_v:")
    set_offsets()
    v_body(True)
    a(f"s_add_u32 s{sCNT}, s{sCNT}, 1")
    a(f"s_cmp_lt_u32 s{sCNT}, 7")
    a("s_cbranch_scc1 L_v")
    v_body(False)

    for e in range(4):
        a(f"v_add_f32 v{8+e}, v{ACC+4*e}, v{ACC+4*e+1}")
        a(f"v_add_f32 v{12+e}, v{ACC+4*e+2}, v{ACC+4*e+3}")
    a(f"v_add_u32 v16, s{sLW}, v{OFF0}")
    a("s_mov_b32 exec_hi, 0")
    a("ds_write_b128 v16, v[8:11]")
    a("ds_write_b128 v16, v[12:15] offset:512")
    a("s_mov_b64 exec, -1")
    a("s_waitcnt lgkmcnt(0)")
    a("s_barrier")
    a("s_cmp_lg_u32 s3, 0")
    a("s_cbranch_scc1 L_end")

    a(f"v_lshrrev_b32 v8, 9, v{OFF0}")
    a("v_lshlrev_b32 v8, 6, v8")
    a(f"v_add_u32 v8, {MLB}, v8")
    for i in range(4):
        a(f"ds_read_b128 v[{16+4*i}:{19+4*i}], v8 offset:{i*16}")
    for i in range(4):
        a(f"ds_read_b128 v[{32+4*i}:{35+4*i}], v8 offset:{128+i*16}")
    a(f"v_add_u32 v9, {8*WB}, v{OFF0}")
    for w in range(16):
        base = OFF0 if w < 8 else 9
        a(f"ds_read_b128 v[{64+4*w}:{67+4*w}], v{base} offset:{(w&7)*WB}")
    a("s_waitcnt lgkmcnt(15)")
    a("v_max3_f32 v10, v16, v17, v18")
    for i in range(19, 31, 2):
        a(f"v_max3_f32 v10, v10, v{i}, v{i+1}")
    a("v_max_f32 v10, v10, v31")
    for i in range(16):
        a(f"v_sub_f32 v{16+i}, v{16+i}, v10")
    for i in range(16):
        a(f"v_mul_f32 v{16+i}, s{sLOG2E}, v{16+i}")
    for i in range(16):
        a(f"v_exp_f32 v{16+i}, v{16+i}")
    a("v_mul_f32 v11, v16, v32")
    for i in range(1, 16):
        a(f"v_fmac_f32 v11, v{16+i}, v{32+i}")
    a("s_waitcnt lgkmcnt(0)")
    for e in range(4):
        a(f"v_mul_f32 v{12+e}, v16, v{64+e}")
    for w in range(1, 16):
        for e in range(4):
            a(f"v_fmac_f32 v{12+e}, v{16+w}, v{64+4*w+e}")
    a("s_mov_b32 s24, s22")
    a("s_and_b32 s25, s23, 0xffff")
    a(f"s_mov_b32 s26, {256*2048}")
    a("s_mov_b32 s27, 0x00020000")
    a("s_lshl_b32 s43, s2, 11")
    a(f"v_lshrrev_b32 v8, 1, v{OFF0}")
    a(f"buffer_store_dwordx4 v[12:15], v{OFF0}, s[24:27], s43 offen sc1")
    a("buffer_store_dwordx2 v[10:11], v8, s[24:27], s43 offen offset:1024 sc1")
    a(f"s_lshl_b32 s44, s{sBH}, 2")
    a("v_mov_b32 v16, s44")
    a("v_mov_b32 v17, 1")
    a("s_waitcnt vmcnt(0)")
    a("s_mov_b64 exec, 1")
    a("global_atomic_add v18, v16, v17, s[20:21] sc0")
    a("s_waitcnt vmcnt(0)")
    a("v_readfirstlane_b32 s45, v18")
    a("s_mov_b64 exec, -1")
    if stamp:
        a("s_memrealtime s[62:63]")
        a("s_waitcnt lgkmcnt(0)")
        a("v_mov_b32 v20, s60")
        a("v_mov_b32 v21, s61")
        a("v_mov_b32 v22, s62")
        a("v_mov_b32 v23, s63")
        a("s_lshl_b32 s46, s2, 4")
        a("s_add_u32 s46, s46, 0x100000")
        a("v_mov_b32 v24, s46")
        a("s_mov_b64 exec, 1")
        a("global_store_dwordx4 v24, v[20:23], s[22:23]")
        a("s_mov_b64 exec, -1")
    a("s_cmp_lg_u32 s45, 7")
    a("s_cbranch_scc1 L_end")
    a(f"s_lshl_b32 s43, s{sBH}, 14")
    for p in range(8):
        a(f"buffer_load_dwordx2 v[{16+2*p}:{17+2*p}], v8, s[24:27], s43 offen offset:1024 sc1")
        a(f"buffer_load_dwordx4 v[{64+4*p}:{67+4*p}], v{OFF0}, s[24:27], s43 offen sc1")
        if p < 7:
            a("s_add_u32 s43, s43, 2048")
    a("s_mov_b32 s28, s18")
    a("s_and_b32 s29, s19, 0xffff")
    a("s_mov_b32 s30, 16384")
    a("s_mov_b32 s31, 0x00020000")
    a(f"s_lshl_b32 s44, s{sBH}, 9")
    a("s_waitcnt vmcnt(0)")
    a("v_max3_f32 v10, v16, v18, v20")
    a("v_max3_f32 v10, v10, v22, v24")
    a("v_max3_f32 v10, v10, v26, v28")
    a("v_max_f32 v10, v10, v30")
    for p in range(8):
        a(f"v_sub_f32 v{16+2*p}, v{16+2*p}, v10")
    for p in range(8):
        a(f"v_mul_f32 v{16+2*p}, s{sLOG2E}, v{16+2*p}")
    for p in range(8):
        a(f"v_exp_f32 v{16+2*p}, v{16+2*p}")
    a("v_mul_f32 v11, v16, v17")
    for p in range(1, 8):
        a(f"v_fmac_f32 v11, v{16+2*p}, v{17+2*p}")
    for e in range(4):
        a(f"v_mul_f32 v{12+e}, v16, v{64+e}")
    for p in range(1, 8):
        for e in range(4):
            a(f"v_fmac_f32 v{12+e}, v{16+2*p}, v{64+4*p+e}")
    a("v_rcp_f32 v11, v11")
    for e in range(4):
        a(f"v_mul_f32 v{12+e}, v{12+e}, v11")
    a("v_cvt_pk_bf16_f32 v12, v12, v13")
    a("v_cvt_pk_bf16_f32 v13, v14, v15")
    a("buffer_store_dwordx2 v[12:13], v8, s[28:31], s44 offen")
    a("L_end:")
    a("s_endpgm")
    n = a.pad()
    a.check_loop("L_k")
    a.check_loop("L_v")
    txt = HEADER
    txt += f"; @launch grid=(256,1,1) block=(1024,1,1) lds={LDS}\n"
    txt += '.amdgcn_target "amdgcn-amd-amdhsa--gfx950"\n.text\n'
    txt += f".globl {KN}_kernel\n.p2align 8\n.type {KN}_kernel,@function\n"
    txt += a.text()
    txt += f""".section .rodata,"a"
.p2align 6
.amdhsa_kernel {KN}_kernel
  .amdhsa_next_free_vgpr 128
  .amdhsa_next_free_sgpr 72
  .amdhsa_accum_offset 128
  .amdhsa_group_segment_fixed_size 0
  .amdhsa_kernarg_size 80
  .amdhsa_user_sgpr_count 2
  .amdhsa_user_sgpr_kernarg_segment_ptr 1
  .amdhsa_system_sgpr_workgroup_id_x 1
  .amdhsa_float_denorm_mode_32 3
.end_amdhsa_kernel
"""
    return txt


if __name__ == "__main__":
    out = sys.argv[1]
    kw = {}
    for x in sys.argv[2:]:
        k, v = x.split("=")
        kw[k] = int(v) if v.lstrip("-").isdigit() else v
    open(out, "w").write(gen(**kw))
```

```python
import sys
from asmlib import Asm

KN = "standalone__kv_cache_quant_int4_int2_kv_with_per_channel_or_per_token_scales__decode"

HEADER = """; Kernarg layout for this problem (80 bytes, ptrs only, base s[0:1]):
"""


def gen(rot=0, policy="nt", stamp=False):
    NW = 16
    WB = 6144
    MLB = NW * WB
    LDS = MLB + 256
    a = Asm()
    OFF0, OFF1, ADA, ADZ, ADL, ADPW, MX, LANE = 0, 1, 2, 3, 4, 5, 6, 7
    AOP = 4
    KZ, KS, Q0, Q1 = 8, 12, 16, 18
    T0, U0 = 20, 24
    S, W, U, TT, KP = 32, 40, 42, 46, 47
    ZR, SR, TV, B, ACC, RING = 8, 16, 24, 32, 48, 64
    sSRD, sA, sB, sCNT, sMASK, sB0, sB1, sEXA, sSCALE, sLOG2E, sWBASE, sBH = 24, 28, 29, 30, 31, 32, 34, 36, 38, 39, 40, 41
    sROT, sLW = 42, 47
    P0, P1, P2, P3, P4, P5, P6, P7 = 32, 33, 34, 35, 36, 37, 38, 39

    a(f"{KN}_kernel:")
    a("s_cmp_ge_u32 s2, 256")
    a("s_cbranch_scc1 L_end")
    a("s_load_dwordx16 s[4:19], s[0:1], 0")
    a("s_load_dwordx4 s[20:23], s[0:1], 64")
    if stamp:
        a("s_memrealtime s[60:61]")
    a(f"v_lshrrev_b32 v{P0}, 6, v0")
    a(f"v_and_b32 v{LANE}, 63, v0")
    a(f"v_readfirstlane_b32 s3, v{P0}")
    a(f"v_lshlrev_b32 v{OFF0}, 4, v{LANE}")
    a(f"v_add_u32 v{OFF1}, 0x1000, v{OFF0}")
    a(f"s_lshr_b32 s{sBH}, s2, 3")
    a(f"s_mov_b32 s{sMASK}, 0xffff0000")
    a(f"s_mov_b32 s{sB0}, 0xaaaaaaaa")
    a(f"s_mov_b32 s{sB0+1}, 0xaaaaaaaa")
    a(f"s_mov_b32 s{sB1}, 0xcccccccc")
    a(f"s_mov_b32 s{sB1+1}, 0xcccccccc")
    a(f"s_mov_b32 s{sEXA}, 0x00f0000f")
    a(f"s_mov_b32 s{sEXA+1}, 0x00f0000f")
    a(f"s_mov_b32 s{sSCALE}, 0x3db504f3")
    a(f"s_mov_b32 s{sLOG2E}, 0x3fb8aa3b")
    a(f"s_mul_i32 s{sROT}, s2, {rot}")
    a(f"s_and_b32 s{sROT}, s{sROT}, 7")
    a(f"s_lshl_b32 s{sWBASE}, s2, 21")
    a("s_lshl_b32 s43, s3, 13")
    a(f"s_add_u32 s{sWBASE}, s{sWBASE}, s43")
    a(f"v_and_b32 v{P0}, 31, v{LANE}")
    a(f"v_lshlrev_b32 v{P0}, 3, v{P0}")
    a(f"s_lshl_b32 s43, s{sBH}, 9")
    a(f"v_add_u32 v{P1}, s43, v{P0}")
    a("s_bfe_u32 s44, s2, 0x10002")
    a("s_lshl_b32 s44, s44, 8")
    a("s_add_u32 s44, s44, s43")
    a(f"v_add_u32 v{P2}, s44, v{P0}")
    a(f"v_lshrrev_b32 v{P3}, 2, v{LANE}")
    a(f"s_lshl_b32 s45, s{sROT}, 1")
    a(f"v_add_u32 v{P3}, s45, v{P3}")
    a(f"v_and_b32 v{P3}, 15, v{P3}")
    a(f"v_lshlrev_b32 v{P3}, 9, v{P3}")
    a(f"v_and_b32 v{P4}, 3, v{LANE}")
    a(f"v_lshl_add_u32 v{P3}, v{P4}, 3, v{P3}")
    a("s_lshl_b32 s45, s2, 13")
    a("s_lshl_b32 s46, s3, 5")
    a("s_add_u32 s45, s45, s46")
    a(f"v_add_u32 v{P3}, s45, v{P3}")
    a(f"s_mul_i32 s{sLW}, s3, {WB}")
    a(f"v_lshlrev_b32 v{ADL}, 2, v{LANE}")
    a(f"v_add_u32 v{ADL}, s{sLW}, v{ADL}")
    a(f"v_bfe_u32 v{P5}, v{LANE}, 4, 2")
    a(f"v_lshlrev_b32 v{P5}, 5, v{P5}")
    a(f"v_bfe_u32 v{P6}, v{LANE}, 1, 1")
    a(f"v_lshl_add_u32 v{P5}, v{P6}, 7, v{P5}")
    a(f"v_and_b32 v{P6}, 1, v{LANE}")
    a(f"v_lshl_add_u32 v{P5}, v{P6}, 3, v{P5}")
    a(f"v_bfe_u32 v{P6}, v{LANE}, 3, 1")
    a(f"v_lshl_add_u32 v{P5}, v{P6}, 1, v{P5}")
    a(f"v_bfe_u32 v{P6}, v{LANE}, 2, 1")
    a(f"v_lshl_add_u32 v{P5}, v{P6}, 2, v{P5}")
    a(f"s_add_u32 s48, s{sLW}, 2048")
    a(f"v_add_u32 v{ADPW}, s48, v{P5}")
    a(f"v_lshrrev_b32 v{P5}, 5, v{LANE}")
    a(f"v_lshl_add_u32 v{P6}, v{P5}, 2, v{P4}")
    a(f"v_lshlrev_b32 v{P6}, 4, v{P6}")
    a(f"v_add_u32 v{ADA}, s48, v{P6}")
    a(f"v_lshlrev_b32 v{P5}, 6, v{P5}")
    a(f"s_add_u32 s48, s{sLW}, 4096")
    a(f"v_add_u32 v{ADZ}, s48, v{P5}")
    a(f"v_lshrrev_b32 v{P7}, 2, v{LANE}")
    a(f"v_lshlrev_b32 v{P7}, 7, v{P7}")
    a(f"v_lshl_add_u32 v{P7}, v{P4}, 3, v{P7}")
    a(f"v_add_u32 v{P7}, s48, v{P7}")
    a(f"v_mov_b32 v{MX}, 0xff800000")
    a("s_waitcnt lgkmcnt(0)")
    a(f"global_load_dwordx2 v[{Q0}:{Q0+1}], v{P1}, s[4:5]")
    a(f"global_load_dwordx2 v[{Q1}:{Q1+1}], v{P1}, s[4:5] offset:256")
    a(f"global_load_dwordx2 v[20:21], v{P2}, s[10:11]")
    a(f"global_load_dwordx2 v[22:23], v{P2}, s[12:13]")
    a(f"global_load_dwordx2 v[24:25], v{P3}, s[14:15]")
    a(f"global_load_dwordx2 v[26:27], v{P3}, s[16:17]")
    a(f"s_mov_b32 s{sSRD}, s6")
    a(f"s_and_b32 s{sSRD+1}, s7, 0xffff")
    a(f"s_mov_b32 s{sSRD+2}, 0x20000000")
    a(f"s_mov_b32 s{sSRD+3}, 0x00020000")
    a("s_and_b32 s9, s9, 0xffff")

    def set_offsets():
        a(f"s_lshl_b32 s{sA}, s{sROT}, 18")
        a(f"s_add_u32 s{sA}, s{sA}, s{sWBASE}")
        a(f"s_add_u32 s{sB}, s{sA}, 0x20000")
        a(f"s_add_u32 s{sROT}, s{sROT}, 1")
        a(f"s_and_b32 s{sROT}, s{sROT}, 7")

    def load(slot):
        r = RING + slot * 4
        u = slot & 7
        so = sA if slot < 8 else sB
        vo = OFF0 if u < 4 else OFF1
        a(f"buffer_load_dwordx4 v[{r}:{r+3}], v{vo}, s[{sSRD}:{sSRD+3}], s{so} offen offset:{(u&3)*1024} {policy}")

    set_offsets()
    for s in range(16):
        load(s)
    a("s_waitcnt vmcnt(16)")
    a(f"v_lshlrev_b32 v{KS}, 16, v20")
    a(f"v_and_b32 v{KS+1}, s{sMASK}, v20")
    a(f"v_lshlrev_b32 v{KS+2}, 16, v21")
    a(f"v_and_b32 v{KS+3}, s{sMASK}, v21")
    a(f"v_lshlrev_b32 v{KZ}, 16, v22")
    a(f"v_and_b32 v{KZ+1}, s{sMASK}, v22")
    a(f"v_lshlrev_b32 v{KZ+2}, 16, v23")
    a(f"v_and_b32 v{KZ+3}, s{sMASK}, v23")
    a("v_lshlrev_b32 v40, 16, v26")
    a("v_lshlrev_b32 v41, 16, v27")
    a(f"v_and_b32 v42, s{sMASK}, v26")
    a(f"v_and_b32 v43, s{sMASK}, v27")
    a("v_lshlrev_b32 v44, 16, v24")
    a("v_lshlrev_b32 v45, 16, v25")
    a(f"v_and_b32 v46, s{sMASK}, v24")
    a(f"v_and_b32 v47, s{sMASK}, v25")
    a(f"ds_write_b64 v{P7}, v[40:41]")
    a(f"ds_write_b64 v{P7}, v[42:43] offset:64")
    a(f"ds_write_b64 v{P7}, v[44:45] offset:32")
    a(f"ds_write_b64 v{P7}, v[46:47] offset:96")
    for i in range(16):
        a(f"v_mov_b32 v{ACC+i}, 0")

    if stamp:
        a("s_memrealtime s[62:63]")
        a("s_waitcnt lgkmcnt(0)")
    a(f"s_mov_b32 s{sCNT}, 0")
    a("L_k:")
    a(f"s_cmp_eq_u32 s{sCNT}, 7")
    a(f"s_cselect_b32 s{sSRD}, s8, s{sSRD}")
    a(f"s_cselect_b32 s{sSRD+1}, s9, s{sSRD+1}")
    set_offsets()
    for st in range(4):
        for jl in range(4):
            slot = st * 4 + jl
            r = RING + slot * 4
            a("s_waitcnt vmcnt(15)")
            for e in range(4):
                a(f"v_cvt_f32_i32 v{T0+e}, v{r+e}")
            load(slot)
            a(f"v_pk_add_f32 v[{T0}:{T0+1}], v[{T0}:{T0+1}], v[{KZ}:{KZ+1}] neg_lo:[0,1] neg_hi:[0,1]")
            a(f"v_pk_add_f32 v[{T0+2}:{T0+3}], v[{T0+2}:{T0+3}], v[{KZ+2}:{KZ+3}] neg_lo:[0,1] neg_hi:[0,1]")
            a(f"v_cvt_pk_bf16_f32 v{U0}, v{T0}, v{T0+1}")
            a(f"v_cvt_pk_bf16_f32 v{U0+1}, v{T0+2}, v{T0+3}")
            a(f"v_lshlrev_b32 v{T0}, 16, v{U0}")
            a(f"v_and_b32 v{T0+1}, s{sMASK}, v{U0}")
            a(f"v_lshlrev_b32 v{T0+2}, 16, v{U0+1}")
            a(f"v_and_b32 v{T0+3}, s{sMASK}, v{U0+1}")
            a(f"v_pk_mul_f32 v[{T0}:{T0+1}], v[{T0}:{T0+1}], v[{KS}:{KS+1}]")
            a(f"v_pk_mul_f32 v[{T0+2}:{T0+3}], v[{T0+2}:{T0+3}], v[{KS+2}:{KS+3}]")
            a(f"v_cvt_pk_bf16_f32 v{U0}, v{T0}, v{T0+1}")
            a(f"v_cvt_pk_bf16_f32 v{U0+1}, v{T0+2}, v{T0+3}")
            s0, s1 = S + jl * 2, S + jl * 2 + 1
            a(f"v_dot2_f32_bf16 v{s0}, v{U0}, v{Q0}, 0")
            a(f"v_dot2_f32_bf16 v{s1}, v{U0}, v{Q1}, 0")
            a(f"v_dot2_f32_bf16 v{s0}, v{U0+1}, v{Q0+1}, v{s0}")
            a(f"v_dot2_f32_bf16 v{s1}, v{U0+1}, v{Q1+1}, v{s1}")
        for jl in range(4):
            s0, s1 = S + jl * 2, S + jl * 2 + 1
            a(f"v_permlane16_swap_b32 v{s0}, v{s1}")
        for jl in range(4):
            s0, s1 = S + jl * 2, S + jl * 2 + 1
            a(f"v_add_f32 v{s0}, v{s0}, v{s1}")
        a(f"v_add_f32_dpp v{W}, v{S}, v{S} row_mirror row_mask:0xf bank_mask:0x3")
        a(f"v_add_f32_dpp v{W+1}, v{S+4}, v{S+4} row_mirror row_mask:0xf bank_mask:0x3")
        a(f"v_add_f32_dpp v{W}, v{S+2}, v{S+2} row_mirror row_mask:0xf bank_mask:0xc")
        a(f"v_add_f32_dpp v{W+1}, v{S+6}, v{S+6} row_mirror row_mask:0xf bank_mask:0xc")
        a(f"v_add_f32_dpp v{U+st}, v{W}, v{W} row_half_mirror row_mask:0xf bank_mask:0x5")
        a(f"v_add_f32_dpp v{U+st}, v{W+1}, v{W+1} row_half_mirror row_mask:0xf bank_mask:0xa")
    a(f"v_cndmask_b32 v{TT}, v{U+1}, v{U}, s[{sB0}:{sB0+1}]")
    a(f"v_cndmask_b32 v{KP}, v{U}, v{U+1}, s[{sB0}:{sB0+1}]")
    a(f"v_cndmask_b32 v{S}, v{U+3}, v{U+2}, s[{sB0}:{sB0+1}]")
    a(f"v_cndmask_b32 v{S+1}, v{U+2}, v{U+3}, s[{sB0}:{sB0+1}]")
    a(f"v_add_f32_dpp v{W}, v{TT}, v{KP} quad_perm:[1,0,3,2] row_mask:0xf bank_mask:0xf")
    a(f"v_add_f32_dpp v{W+1}, v{S}, v{S+1} quad_perm:[1,0,3,2] row_mask:0xf bank_mask:0xf")
    a(f"v_cndmask_b32 v{TT}, v{W+1}, v{W}, s[{sB1}:{sB1+1}]")
    a(f"v_cndmask_b32 v{KP}, v{W}, v{W+1}, s[{sB1}:{sB1+1}]")
    a(f"v_add_f32_dpp v{W}, v{TT}, v{KP} quad_perm:[2,3,0,1] row_mask:0xf bank_mask:0xf")
    a(f"v_cvt_pk_bf16_f32 v{W}, v{W}, v{W}")
    a(f"v_lshlrev_b32 v{W}, 16, v{W}")
    a(f"v_mul_f32 v{W}, s{sSCALE}, v{W}")
    a(f"v_cvt_pk_bf16_f32 v{W}, v{W}, v{W}")
    a(f"v_lshlrev_b32 v{W}, 16, v{W}")
    a(f"v_max_f32 v{MX}, v{MX}, v{W}")
    a(f"ds_write_b32 v{ADL}, v{W}")
    a(f"v_add_u32 v{ADL}, 0x100, v{ADL}")
    a(f"s_add_u32 s{sCNT}, s{sCNT}, 1")
    a(f"s_cmp_lt_u32 s{sCNT}, 8")
    a("s_cbranch_scc1 L_k")

    if stamp:
        a("s_memrealtime s[64:65]")
        a("s_waitcnt lgkmcnt(0)")
    LG = 8
    a(f"v_subrev_u32 v{ADL}, 0x800, v{ADL}")
    a("s_waitcnt lgkmcnt(0)")
    for n in range(8):
        a(f"ds_read_b32 v{LG+n}, v{ADL} offset:{n*256}")
    a(f"v_max_f32_dpp v{MX}, v{MX}, v{MX} quad_perm:[1,0,3,2] row_mask:0xf bank_mask:0xf")
    a(f"v_max_f32_dpp v{MX}, v{MX}, v{MX} quad_perm:[2,3,0,1] row_mask:0xf bank_mask:0xf")
    a(f"v_max_f32_dpp v{MX}, v{MX}, v{MX} row_half_mirror row_mask:0xf bank_mask:0xf")
    a(f"v_max_f32_dpp v{MX}, v{MX}, v{MX} row_mirror row_mask:0xf bank_mask:0xf")
    a(f"v_mov_b32 v16, v{MX}")
    a(f"v_permlane32_swap_b32 v{MX}, v16")
    a(f"v_max_f32 v{MX}, v{MX}, v16")
    a("s_waitcnt lgkmcnt(0)")
    for n in range(8):
        a(f"v_sub_f32 v{LG+n}, v{LG+n}, v{MX}")
    for n in range(8):
        a(f"v_mul_f32 v{LG+n}, s{sLOG2E}, v{LG+n}")
    for n in range(8):
        a(f"v_exp_f32 v{LG+n}, v{LG+n}")
    SM = 17
    a(f"v_add_f32 v{SM}, v{LG}, v{LG+1}")
    for n in range(2, 8):
        a(f"v_add_f32 v{SM}, v{SM}, v{LG+n}")
    for n in range(8):
        a(f"v_cvt_pk_bf16_f32 v{24+n}, v{LG+n}, v{LG+n}")
    for n in range(8):
        a(f"v_lshlrev_b32 v{24+n}, 16, v{24+n}")
    for n in range(8):
        a(f"v_sub_f32 v{24+n}, v{LG+n}, v{24+n}")
    for n in range(8):
        a(f"v_cvt_pk_bf16_f32 v{24+n}, v{LG+n}, v{24+n}")
    for n in range(8):
        a(f"ds_write_b16 v{ADPW}, v{24+n} offset:{n*256}")
        a(f"ds_write_b16_d16_hi v{ADPW}, v{24+n} offset:{n*256+16}")
    a(f"v_add_f32_dpp v{SM}, v{SM}, v{SM} quad_perm:[1,0,3,2] row_mask:0xf bank_mask:0xf")
    a(f"v_add_f32_dpp v{SM}, v{SM}, v{SM} quad_perm:[2,3,0,1] row_mask:0xf bank_mask:0xf")
    a(f"v_add_f32_dpp v{SM}, v{SM}, v{SM} row_half_mirror row_mask:0xf bank_mask:0xf")
    a(f"v_add_f32_dpp v{SM}, v{SM}, v{SM} row_mirror row_mask:0xf bank_mask:0xf")
    a(f"v_mov_b32 v16, v{SM}")
    a(f"v_permlane32_swap_b32 v{SM}, v16")
    a(f"v_add_f32 v{SM}, v{SM}, v16")
    a(f"v_bfe_u32 v16, v{LANE}, 4, 1")
    a("v_lshlrev_b32 v16, 6, v16")
    a("s_lshl_b32 s43, s3, 2")
    a(f"s_add_u32 s43, s43, {MLB}")
    a("v_add_u32 v16, s43, v16")
    a(f"ds_write_b32 v16, v{MX}")
    a(f"ds_write_b32 v16, v{SM} offset:128")
    for i in range(4):
        a(f"v_mov_b32 v{AOP+i}, 0")

    def v_body(with_loads):
        for gp in range(2):
            a(f"ds_read_b128 v[{ZR}:{ZR+3}], v{ADZ} offset:{gp*128}")
            a(f"ds_read_b128 v[{ZR+4}:{ZR+7}], v{ADZ} offset:{gp*128+16}")
            a(f"ds_read_b128 v[{SR}:{SR+3}], v{ADZ} offset:{gp*128+32}")
            a(f"ds_read_b128 v[{SR+4}:{SR+7}], v{ADZ} offset:{gp*128+48}")
            a(f"s_mov_b64 exec, s[{sEXA}:{sEXA+1}]")
            a(f"ds_read_b128 v[{AOP}:{AOP+3}], v{ADA} offset:{gp*128}")
            a("s_mov_b64 exec, -1")
            for jj in range(4):
                for k in range(2):
                    slot = gp * 8 + jj * 2 + k
                    r = RING + slot * 4
                    a(f"s_waitcnt vmcnt({15 if with_loads else 15 - slot})")
                    for e in range(4):
                        a(f"v_cvt_f32_i32 v{TV+2*e+k}, v{r+e}")
                    if with_loads:
                        load(slot)
                if jj == 0:
                    a("s_waitcnt lgkmcnt(0)")
                z = ZR + 2 * jj
                sc = SR + 2 * jj
                for e in range(4):
                    t = TV + 2 * e
                    a(f"v_pk_add_f32 v[{t}:{t+1}], v[{t}:{t+1}], v[{z}:{z+1}] neg_lo:[0,1] neg_hi:[0,1]")
                for e in range(4):
                    t = TV + 2 * e
                    a(f"v_cvt_pk_bf16_f32 v{B+4*e+jj}, v{t}, v{t+1}")
                for e in range(4):
                    t = TV + 2 * e
                    a(f"v_lshlrev_b32 v{t}, 16, v{B+4*e+jj}")
                    a(f"v_and_b32 v{t+1}, s{sMASK}, v{B+4*e+jj}")
                for e in range(4):
                    t = TV + 2 * e
                    a(f"v_pk_mul_f32 v[{t}:{t+1}], v[{t}:{t+1}], v[{sc}:{sc+1}]")
                for e in range(4):
                    t = TV + 2 * e
                    a(f"v_cvt_pk_bf16_f32 v{B+4*e+jj}, v{t}, v{t+1}")
            for e in range(4):
                a(f"v_mfma_f32_16x16x32_bf16 v[{ACC+4*e}:{ACC+4*e+3}], v[{AOP}:{AOP+3}], v[{B+4*e}:{B+4*e+3}], v[{ACC+4*e}:{ACC+4*e+3}]")
        a(f"v_add_u32 v{ADZ}, 0x100, v{ADZ}")
        a(f"v_add_u32 v{ADA}, 0x100, v{ADA}")

    a(f"s_mov_b32 s{sCNT}, 0")
    a("s_waitcnt lgkmcnt(0)")
    a("L_v:")
    set_offsets()
    v_body(True)
    a(f"s_add_u32 s{sCNT}, s{sCNT}, 1")
    a(f"s_cmp_lt_u32 s{sCNT}, 7")
    a("s_cbranch_scc1 L_v")
    v_body(False)

    for e in range(4):
        a(f"v_add_f32 v{8+e}, v{ACC+4*e}, v{ACC+4*e+1}")
        a(f"v_add_f32 v{12+e}, v{ACC+4*e+2}, v{ACC+4*e+3}")
    a(f"v_add_u32 v16, s{sLW}, v{OFF0}")
    a("s_mov_b32 exec_hi, 0")
    a("ds_write_b128 v16, v[8:11]")
    a("ds_write_b128 v16, v[12:15] offset:512")
    a("s_mov_b64 exec, -1")
    a("s_waitcnt lgkmcnt(0)")
    if stamp:
        a("s_memrealtime s[66:67]")
        a("s_waitcnt lgkmcnt(0)")
        for i in range(8):
            a(f"v_mov_b32 v{20+i}, s{60+i}")
        a("s_lshl_b32 s46, s2, 4")
        a("s_add_u32 s46, s46, s3")
        a("s_lshl_b32 s46, s46, 5")
        a("s_add_u32 s46, s46, 0x200000")
        a("v_mov_b32 v28, s46")
        a("s_mov_b64 exec, 1")
        a("global_store_dwordx4 v28, v[20:23], s[22:23]")
        a("global_store_dwordx4 v28, v[24:27], s[22:23] offset:16")
        a("s_mov_b64 exec, -1")
    a("s_barrier")
    if stamp:
        a("s_memrealtime s[60:61]")
        a("s_waitcnt lgkmcnt(0)")
    a("s_cmp_lg_u32 s3, 0")
    a("s_cbranch_scc1 L_end")

    a(f"v_lshrrev_b32 v8, 9, v{OFF0}")
    a("v_lshlrev_b32 v8, 6, v8")
    a(f"v_add_u32 v8, {MLB}, v8")
    for i in range(4):
        a(f"ds_read_b128 v[{16+4*i}:{19+4*i}], v8 offset:{i*16}")
    for i in range(4):
        a(f"ds_read_b128 v[{32+4*i}:{35+4*i}], v8 offset:{128+i*16}")
    a(f"v_add_u32 v9, {8*WB}, v{OFF0}")
    for w in range(16):
        base = OFF0 if w < 8 else 9
        a(f"ds_read_b128 v[{64+4*w}:{67+4*w}], v{base} offset:{(w&7)*WB}")
    a("s_waitcnt lgkmcnt(15)")
    a("v_max3_f32 v10, v16, v17, v18")
    for i in range(19, 31, 2):
        a(f"v_max3_f32 v10, v10, v{i}, v{i+1}")
    a("v_max_f32 v10, v10, v31")
    for i in range(16):
        a(f"v_sub_f32 v{16+i}, v{16+i}, v10")
    for i in range(16):
        a(f"v_mul_f32 v{16+i}, s{sLOG2E}, v{16+i}")
    for i in range(16):
        a(f"v_exp_f32 v{16+i}, v{16+i}")
    a("v_mul_f32 v11, v16, v32")
    for i in range(1, 16):
        a(f"v_fmac_f32 v11, v{16+i}, v{32+i}")
    a("s_waitcnt lgkmcnt(0)")
    for e in range(4):
        a(f"v_mul_f32 v{12+e}, v16, v{64+e}")
    for w in range(1, 16):
        for e in range(4):
            a(f"v_fmac_f32 v{12+e}, v{16+w}, v{64+4*w+e}")
    a("s_mov_b32 s24, s22")
    a("s_and_b32 s25, s23, 0xffff")
    a(f"s_mov_b32 s26, {256*2048}")
    a("s_mov_b32 s27, 0x00020000")
    a("s_lshl_b32 s43, s2, 11")
    a(f"v_lshrrev_b32 v8, 1, v{OFF0}")
    a(f"buffer_store_dwordx4 v[12:15], v{OFF0}, s[24:27], s43 offen sc1")
    a("buffer_store_dwordx2 v[10:11], v8, s[24:27], s43 offen offset:1024 sc1")
    a(f"s_lshl_b32 s44, s{sBH}, 2")
    a("v_mov_b32 v16, s44")
    a("v_mov_b32 v17, 1")
    a("s_waitcnt vmcnt(0)")
    a("s_mov_b64 exec, 1")
    a("global_atomic_add v18, v16, v17, s[20:21] sc0")
    a("s_waitcnt vmcnt(0)")
    a("v_readfirstlane_b32 s45, v18")
    a("s_mov_b64 exec, -1")
    if stamp:
        a("s_memrealtime s[62:63]")
        a("s_waitcnt lgkmcnt(0)")
        a("v_mov_b32 v20, s60")
        a("v_mov_b32 v21, s61")
        a("v_mov_b32 v22, s62")
        a("v_mov_b32 v23, s63")
        a("s_lshl_b32 s46, s2, 4")
        a("s_add_u32 s46, s46, 0x100000")
        a("v_mov_b32 v24, s46")
        a("s_mov_b64 exec, 1")
        a("global_store_dwordx4 v24, v[20:23], s[22:23]")
        a("s_mov_b64 exec, -1")
    a("s_cmp_lg_u32 s45, 7")
    a("s_cbranch_scc1 L_end")
    a(f"s_lshl_b32 s43, s{sBH}, 14")
    for p in range(8):
        a(f"buffer_load_dwordx2 v[{16+2*p}:{17+2*p}], v8, s[24:27], s43 offen offset:1024 sc1")
        a(f"buffer_load_dwordx4 v[{64+4*p}:{67+4*p}], v{OFF0}, s[24:27], s43 offen sc1")
        if p < 7:
            a("s_add_u32 s43, s43, 2048")
    a("s_mov_b32 s28, s18")
    a("s_and_b32 s29, s19, 0xffff")
    a("s_mov_b32 s30, 16384")
    a("s_mov_b32 s31, 0x00020000")
    a(f"s_lshl_b32 s44, s{sBH}, 9")
    a("s_waitcnt vmcnt(0)")
    a("v_max3_f32 v10, v16, v18, v20")
    a("v_max3_f32 v10, v10, v22, v24")
    a("v_max3_f32 v10, v10, v26, v28")
    a("v_max_f32 v10, v10, v30")
    for p in range(8):
        a(f"v_sub_f32 v{16+2*p}, v{16+2*p}, v10")
    for p in range(8):
        a(f"v_mul_f32 v{16+2*p}, s{sLOG2E}, v{16+2*p}")
    for p in range(8):
        a(f"v_exp_f32 v{16+2*p}, v{16+2*p}")
    a("v_mul_f32 v11, v16, v17")
    for p in range(1, 8):
        a(f"v_fmac_f32 v11, v{16+2*p}, v{17+2*p}")
    for e in range(4):
        a(f"v_mul_f32 v{12+e}, v16, v{64+e}")
    for p in range(1, 8):
        for e in range(4):
            a(f"v_fmac_f32 v{12+e}, v{16+2*p}, v{64+4*p+e}")
    a("v_rcp_f32 v11, v11")
    for e in range(4):
        a(f"v_mul_f32 v{12+e}, v{12+e}, v11")
    a("v_cvt_pk_bf16_f32 v12, v12, v13")
    a("v_cvt_pk_bf16_f32 v13, v14, v15")
    a("buffer_store_dwordx2 v[12:13], v8, s[28:31], s44 offen")
    if stamp:
        a("s_waitcnt vmcnt(0)")
        a("s_memrealtime s[62:63]")
        a("s_waitcnt lgkmcnt(0)")
        a("v_mov_b32 v20, s62")
        a("v_mov_b32 v21, s63")
        a(f"s_lshl_b32 s46, s{sBH}, 3")
        a("s_add_u32 s46, s46, 0x300000")
        a("v_mov_b32 v24, s46")
        a("s_mov_b64 exec, 1")
        a("global_store_dwordx2 v24, v[20:21], s[22:23]")
        a("s_mov_b64 exec, -1")
    a("L_end:")
    a("s_endpgm")
    n = a.pad()
    a.check_loop("L_k")
    a.check_loop("L_v")
    txt = HEADER
    txt += f"; @launch grid=(256,1,1) block=(1024,1,1) lds={LDS}\n"
    txt += '.amdgcn_target "amdgcn-amd-amdhsa--gfx950"\n.text\n'
    txt += f".globl {KN}_kernel\n.p2align 8\n.type {KN}_kernel,@function\n"
    txt += a.text()
    txt += f""".section .rodata,"a"
.p2align 6
.amdhsa_kernel {KN}_kernel
  .amdhsa_next_free_vgpr 128
  .amdhsa_next_free_sgpr 72
  .amdhsa_accum_offset 128
  .amdhsa_group_segment_fixed_size 0
  .amdhsa_kernarg_size 80
  .amdhsa_user_sgpr_count 2
  .amdhsa_user_sgpr_kernarg_segment_ptr 1
  .amdhsa_system_sgpr_workgroup_id_x 1
  .amdhsa_float_denorm_mode_32 3
.end_amdhsa_kernel
"""
    return txt


if __name__ == "__main__":
    out = sys.argv[1]
    kw = {}
    for x in sys.argv[2:]:
        k, v = x.split("=")
        kw[k] = int(v) if v.lstrip("-").isdigit() else v
    open(out, "w").write(gen(**kw))
```

```python
import sys
from asmlib import Asm
from gen_v1 import HEADER, KN


def gen(ahead=1, S=50, LA=2, pool=0, stamp=0, sleep=8, policy="nt", cstride=4352, light=0, contig=0):
    W_ = 4
    UB = 8192
    BB = UB * W_
    BPR = (2 << 20) // BB
    DPR = BPR - S
    ND = DPR * 8
    NIF = 16 * ahead
    END = 0x40000000
    L_PROG = 0
    L_ML = 64
    L_P = 128
    L_O = 1024
    L_Q = 5120
    L_ZS = 8192
    CTR_OFF = 1 << 20
    a = Asm()
    VOFF, ZOFF, ADPW, ADA, QRD, PRG, MX, LS = 0, 1, 2, 3, 4, 5, 6, 7
    KZ, KS, Q0, Q1 = 8, 12, 16, 18
    KG = 20
    ZR, SR, TV, B, ACC, AOP = 36, 44, 52, 60, 76, 92
    T0, U0, Sr, Wr, Ur, TT, KP = 36, 40, 42, 50, 52, 54, 55
    LANE = 96
    X0, X1, X2, X3 = 97, 98, 99, 100
    ZRAW = 104
    RING = ZRAW + 8
    NV = RING + 64 * ahead
    sK, sV, sZ, sS = 24, 28, 32, 36
    sMASK, sB0, sEXA, sSCALE, sLOG2E = 40, 42, 44, 46, 47
    sBH, sHB, sSTAT, sREM, sCNT, sGRP = 48, 49, 50, 51, 52, 53
    sT0, sT1, sT2, sT3 = 54, 55, 56, 57
    sOFF = 58
    sZO = 61
    sF0, sF1 = 62, 63
    sST = 64

    a(f"{KN}_kernel:")
    a("s_cmp_ge_u32 s2, 256")
    a("s_cbranch_scc1 L_end")
    a("s_load_dwordx16 s[4:19], s[0:1], 0")
    a("s_load_dwordx4 s[20:23], s[0:1], 64")
    if stamp:
        a(f"s_memrealtime s[{sST}:{sST+1}]")
    a(f"v_lshrrev_b32 v{X0}, 6, v0")
    a(f"v_and_b32 v{LANE}, 63, v0")
    a(f"v_readfirstlane_b32 s3, v{X0}")
    a(f"s_lshr_b32 s{sBH}, s2, 3")
    a(f"s_mov_b32 s{sLOG2E}, 0x3fb8aa3b")
    a(f"s_cmp_eq_u32 s3, {W_}")
    a("s_cbranch_scc1 L_sched")
    a(f"v_and_b32 v{X0}, 31, v{LANE}")
    a(f"v_lshrrev_b32 v{X1}, 5, v{LANE}")
    a(f"v_lshlrev_b32 v{ZOFF}, 4, v{X1}")
    a(f"s_lshl_b32 s{sT0}, s3, 5")
    a(f"s_add_u32 s{sT0}, s{sT0}, {L_ZS}")
    a(f"v_add_u32 v{ZOFF}, s{sT0}, v{ZOFF}")
    a(f"v_lshlrev_b32 v{VOFF}, 12, v{X1}")
    a(f"v_lshl_add_u32 v{VOFF}, v{X0}, 4, v{VOFF}")
    a(f"v_lshlrev_b32 v{X0}, 3, v{X0}")
    a(f"s_lshl_b32 s{sT0}, s{sBH}, 9")
    a(f"v_add_u32 v{X0}, s{sT0}, v{X0}")
    a(f"v_lshlrev_b32 v101, 4, v{LANE}")
    a("v_add_u32 v102, 0x1000, v101")
    a(f"s_mov_b32 s{sMASK}, 0xffff0000")
    a(f"s_mov_b32 s{sB0}, 0xaaaaaaaa")
    a(f"s_mov_b32 s{sB0+1}, 0xaaaaaaaa")
    a(f"s_mov_b32 s{sEXA}, 0x00f0000f")
    a(f"s_mov_b32 s{sEXA+1}, 0x00f0000f")
    a(f"s_mov_b32 s{sSCALE}, 0x3db504f3")
    a(f"s_lshl_b32 s{sT0}, s3, 13")
    a(f"s_lshl_b32 s{sHB}, s{sBH}, 24")
    a(f"s_add_u32 s{sHB}, s{sHB}, s{sT0}")
    a(f"s_lshl_b32 s{sSTAT}, s2, 21")
    a(f"s_add_u32 s{sSTAT}, s{sSTAT}, s{sT0}")
    a(f"s_lshl_b32 s{sT1}, s3, 7")
    a(f"s_add_u32 s{sT1}, s{sT1}, {L_P}")
    a(f"v_bfe_u32 v{X2}, v{LANE}, 4, 2")
    a(f"v_lshlrev_b32 v{X2}, 5, v{X2}")
    a(f"v_and_b32 v{X3}, 1, v{LANE}")
    a(f"v_lshl_add_u32 v{X2}, v{X3}, 3, v{X2}")
    a(f"v_bfe_u32 v{X3}, v{LANE}, 3, 1")
    a(f"v_lshl_add_u32 v{X2}, v{X3}, 1, v{X2}")
    a(f"v_bfe_u32 v{X3}, v{LANE}, 2, 1")
    a(f"v_lshl_add_u32 v{X2}, v{X3}, 2, v{X2}")
    a(f"v_add_u32 v{ADPW}, s{sT1}, v{X2}")
    a(f"v_and_b32 v{X3}, 3, v{LANE}")
    a(f"v_lshl_add_u32 v{X2}, v{X1}, 2, v{X3}")
    a(f"v_lshlrev_b32 v{X2}, 4, v{X2}")
    a(f"v_add_u32 v{ADA}, s{sT1}, v{X2}")
    a(f"v_mov_b32 v{QRD}, {L_Q}")
    a(f"s_lshl_b32 s{sT1}, s3, 2")
    a(f"v_mov_b32 v{PRG}, s{sT1}")
    a(f"v_mov_b32 v{MX}, 0xff800000")
    a(f"v_mov_b32 v{LS}, 0")
    for k in range(ahead):
        a(f"s_mov_b32 s{sOFF+k}, s{sSTAT}")
        a(f"s_add_u32 s{sSTAT}, s{sSTAT}, {BB}")
    a(f"s_mov_b32 s{sREM}, {S - ahead}")
    a(f"s_mov_b32 s{sCNT}, 0")
    a(f"s_mov_b32 s{sGRP}, 2")
    a("s_waitcnt lgkmcnt(0)")
    a(f"global_load_dwordx2 v[{Q0}:{Q0+1}], v{X0}, s[4:5] nt")
    a(f"global_load_dwordx2 v[{Q1}:{Q1+1}], v{X0}, s[4:5] offset:256 nt")
    a(f"global_load_dwordx2 v[{Sr}:{Sr+1}], v{X0}, s[10:11] nt")
    a(f"global_load_dwordx2 v[{Sr+2}:{Sr+3}], v{X0}, s[10:11] offset:256 nt")
    a(f"global_load_dwordx2 v[{Sr+4}:{Sr+5}], v{X0}, s[12:13] nt")
    a(f"global_load_dwordx2 v[{Sr+6}:{Sr+7}], v{X0}, s[12:13] offset:256 nt")
    for (srd, p, n) in ((sK, 6, 0x20000000), (sV, 8, 0x20000000)):
        a(f"s_mov_b32 s{srd}, s{p}")
        a(f"s_and_b32 s{srd+1}, s{p+1}, 0xffff")
        a(f"s_mov_b32 s{srd+2}, {n}")
        a(f"s_mov_b32 s{srd+3}, 0x00020000")

    def load(ph, kv, j, so):
        r = RING + ph * 64 + kv * 32 + j * 4
        srd = sV if kv else sK
        if contig:
            a(f"buffer_load_dwordx4 v[{r}:{r+3}], v{101 + j//4}, s[{srd}:{srd+3}], s{so} offen offset:{(j%4)*1024} {policy}")
        else:
            a(f"buffer_load_dwordx4 v[{r}:{r+3}], v{VOFF}, s[{srd}:{srd+3}], s{so} offen offset:{j*512} {policy}")

    for k in range(ahead):
        for j in range(8):
            load(k, 0, j, sOFF + k)
        for j in range(8):
            load(k, 1, j, sOFF + k)
    for i in range(16):
        a(f"v_mov_b32 v{ACC+i}, 0")
    for i in range(4):
        a(f"v_mov_b32 v{AOP+i}, 0")
    a(f"s_waitcnt vmcnt({NIF})")
    for g in range(2):
        for i in range(2):
            a(f"v_lshlrev_b32 v{KG+8*g+4+2*i}, 16, v{Sr+2*g+i}")
            a(f"v_and_b32 v{KG+8*g+4+2*i+1}, s{sMASK}, v{Sr+2*g+i}")
            a(f"v_lshlrev_b32 v{KG+8*g+2*i}, 16, v{Sr+4+2*g+i}")
            a(f"v_and_b32 v{KG+8*g+2*i+1}, s{sMASK}, v{Sr+4+2*g+i}")
    if stamp:
        a(f"s_memrealtime s[{sST+2}:{sST+3}]")
        a("s_waitcnt lgkmcnt(0)")

    a("L_loop:")
    for ph in range(ahead):
        NX = sOFF + ahead
        a(f"s_cmp_ge_u32 s{sOFF}, 0x20000000")
        a("s_cbranch_scc1 L_done")
        a(f"s_add_u32 s{sCNT}, s{sCNT}, 1")
        a(f"v_mov_b32 v{X0}, s{sCNT}")
        a(f"ds_write_b32 v{PRG}, v{X0}")
        a(f"s_cmp_lg_u32 s{sREM}, 0")
        a(f"s_cbranch_scc1 L_st{ph}")
        if ahead > 1:
            a(f"s_cmp_ge_u32 s{sOFF+ahead-1}, 0x20000000")
            a(f"s_cbranch_scc1 L_en{ph}")
        a(f"L_poll{ph}:")
        a(f"ds_read_b32 v{X0}, v{QRD}")
        a("s_waitcnt lgkmcnt(0)")
        a(f"v_readfirstlane_b32 s{sT0}, v{X0}")
        a(f"s_cmp_eq_u32 s{sT0}, -1")
        a(f"s_cbranch_scc1 L_poll{ph}")
        a(f"v_add_u32 v{QRD}, 4, v{QRD}")
        a(f"s_add_u32 s{NX}, s{sT0}, s{sHB}")
        a(f"s_branch L_nx{ph}")
        if ahead > 1:
            a(f"L_en{ph}:")
            a(f"s_mov_b32 s{NX}, {END}")
            a(f"s_branch L_nx{ph}")
        a(f"L_st{ph}:")
        a(f"s_mov_b32 s{NX}, s{sSTAT}")
        a(f"s_add_u32 s{sSTAT}, s{sSTAT}, {BB}")
        a(f"s_sub_u32 s{sREM}, s{sREM}, 1")
        a(f"L_nx{ph}:")
        a(f"s_bfe_u32 s{sT0}, s{sOFF}, 0x10017")
        a(f"s_cmp_eq_u32 s{sT0}, s{sGRP}")
        a(f"s_cbranch_scc1 L_gok{ph}")
        a(f"s_mov_b32 s{sGRP}, s{sT0}")
        a(f"s_cmp_eq_u32 s{sT0}, 0")
        a(f"s_cbranch_scc1 L_g0{ph}")
        for i in range(8):
            a(f"v_mov_b32 v{KZ+i}, v{KG+8+i}")
        a(f"s_branch L_gok{ph}")
        a(f"L_g0{ph}:")
        for i in range(8):
            a(f"v_mov_b32 v{KZ+i}, v{KG+i}")
        a(f"L_gok{ph}:")
        for st in range(2):
            for jl in range(4):
                j = st * 4 + jl
                r = RING + ph * 64 + j * 4
                a(f"s_waitcnt vmcnt({NIF-1})")
                for e in range(4):
                    a(f"v_cvt_f32_i32 v{T0+e}, v{r+e}")
                load(ph, 0, j, NX)
                a(f"v_pk_add_f32 v[{T0}:{T0+1}], v[{T0}:{T0+1}], v[{KZ}:{KZ+1}] neg_lo:[0,1] neg_hi:[0,1]")
                a(f"v_pk_add_f32 v[{T0+2}:{T0+3}], v[{T0+2}:{T0+3}], v[{KZ+2}:{KZ+3}] neg_lo:[0,1] neg_hi:[0,1]")
                if not light:
                    a(f"v_cvt_pk_bf16_f32 v{U0}, v{T0}, v{T0+1}")
                    a(f"v_cvt_pk_bf16_f32 v{U0+1}, v{T0+2}, v{T0+3}")
                    a(f"v_lshlrev_b32 v{T0}, 16, v{U0}")
                    a(f"v_and_b32 v{T0+1}, s{sMASK}, v{U0}")
                    a(f"v_lshlrev_b32 v{T0+2}, 16, v{U0+1}")
                    a(f"v_and_b32 v{T0+3}, s{sMASK}, v{U0+1}")
                a(f"v_pk_mul_f32 v[{T0}:{T0+1}], v[{T0}:{T0+1}], v[{KS}:{KS+1}]")
                a(f"v_pk_mul_f32 v[{T0+2}:{T0+3}], v[{T0+2}:{T0+3}], v[{KS+2}:{KS+3}]")
                a(f"v_cvt_pk_bf16_f32 v{U0}, v{T0}, v{T0+1}")
                a(f"v_cvt_pk_bf16_f32 v{U0+1}, v{T0+2}, v{T0+3}")
                s0, s1 = Sr + jl * 2, Sr + jl * 2 + 1
                a(f"v_dot2_f32_bf16 v{s0}, v{U0}, v{Q0}, 0")
                a(f"v_dot2_f32_bf16 v{s1}, v{U0}, v{Q1}, 0")
                a(f"v_dot2_f32_bf16 v{s0}, v{U0+1}, v{Q0+1}, v{s0}")
                a(f"v_dot2_f32_bf16 v{s1}, v{U0+1}, v{Q1+1}, v{s1}")
            for jl in range(4):
                a(f"v_permlane16_swap_b32 v{Sr+jl*2}, v{Sr+jl*2+1}")
            for jl in range(4):
                a(f"v_add_f32 v{Sr+jl*2}, v{Sr+jl*2}, v{Sr+jl*2+1}")
            a(f"v_add_f32_dpp v{Wr}, v{Sr}, v{Sr} row_mirror row_mask:0xf bank_mask:0x3")
            a(f"v_add_f32_dpp v{Wr+1}, v{Sr+4}, v{Sr+4} row_mirror row_mask:0xf bank_mask:0x3")
            a(f"v_add_f32_dpp v{Wr}, v{Sr+2}, v{Sr+2} row_mirror row_mask:0xf bank_mask:0xc")
            a(f"v_add_f32_dpp v{Wr+1}, v{Sr+6}, v{Sr+6} row_mirror row_mask:0xf bank_mask:0xc")
            a(f"v_add_f32_dpp v{Ur+st}, v{Wr}, v{Wr} row_half_mirror row_mask:0xf bank_mask:0x5")
            a(f"v_add_f32_dpp v{Ur+st}, v{Wr+1}, v{Wr+1} row_half_mirror row_mask:0xf bank_mask:0xa")
        if ph == 0:
            a(f"s_cmp_lg_u32 s{sCNT}, 1")
            a("s_cbranch_scc1 L_nobar")
            a("s_barrier")
            a("L_nobar:")
        a(f"ds_read_b128 v[{ZRAW}:{ZRAW+3}], v{ZOFF}")
        a(f"ds_read_b128 v[{ZRAW+4}:{ZRAW+7}], v{ZOFF} offset:128")
        a(f"v_add_u32 v{ZOFF}, 0x100, v{ZOFF}")
        a(f"v_cndmask_b32 v{TT}, v{Ur+1}, v{Ur}, s[{sB0}:{sB0+1}]")
        a(f"v_cndmask_b32 v{KP}, v{Ur}, v{Ur+1}, s[{sB0}:{sB0+1}]")
        a(f"v_add_f32_dpp v{Wr}, v{TT}, v{KP} quad_perm:[1,0,3,2] row_mask:0xf bank_mask:0xf")
        a(f"v_add_f32_dpp v{Wr}, v{Wr}, v{Wr} quad_perm:[2,3,0,1] row_mask:0xf bank_mask:0xf")
        a(f"v_cvt_pk_bf16_f32 v{Wr}, v{Wr}, v{Wr}")
        a(f"v_lshlrev_b32 v{Wr}, 16, v{Wr}")
        a(f"v_mul_f32 v{Wr}, s{sSCALE}, v{Wr}")
        a(f"v_cvt_pk_bf16_f32 v{Wr}, v{Wr}, v{Wr}")
        a(f"v_lshlrev_b32 v{Wr}, 16, v{Wr}")
        a(f"v_cmp_gt_f32 vcc, v{Wr}, v{MX}")
        a("s_nop 1")
        a(f"s_cbranch_vccz L_nomax{ph}")
        a(f"v_max_f32_dpp v{TT}, v{Wr}, v{Wr} quad_perm:[1,0,3,2] row_mask:0xf bank_mask:0xf")
        a(f"v_max_f32_dpp v{TT}, v{TT}, v{TT} row_half_mirror row_mask:0xf bank_mask:0xf")
        a(f"v_max_f32_dpp v{TT}, v{TT}, v{TT} row_mirror row_mask:0xf bank_mask:0xf")
        a(f"v_mov_b32 v{KP}, v{TT}")
        a(f"v_permlane32_swap_b32 v{TT}, v{KP}")
        a(f"v_max3_f32 v{TT}, v{TT}, v{KP}, v{MX}")
        a(f"v_sub_f32 v{KP}, v{MX}, v{TT}")
        a(f"v_mul_f32 v{KP}, s{sLOG2E}, v{KP}")
        a(f"v_exp_f32 v{KP}, v{KP}")
        a(f"v_mov_b32 v{MX}, v{TT}")
        a(f"v_mul_f32 v{LS}, v{LS}, v{KP}")
        a(f"v_readlane_b32 s{sF0}, v{KP}, 0")
        a(f"v_readlane_b32 s{sF1}, v{KP}, 16")
        for e in range(4):
            a(f"v_mul_f32 v{ACC+4*e}, s{sF0}, v{ACC+4*e}")
            a(f"v_mul_f32 v{ACC+4*e+1}, s{sF0}, v{ACC+4*e+1}")
            a(f"v_mul_f32 v{ACC+4*e+2}, s{sF1}, v{ACC+4*e+2}")
            a(f"v_mul_f32 v{ACC+4*e+3}, s{sF1}, v{ACC+4*e+3}")
        a(f"L_nomax{ph}:")
        a(f"v_sub_f32 v{Wr}, v{Wr}, v{MX}")
        a(f"v_mul_f32 v{Wr}, s{sLOG2E}, v{Wr}")
        a(f"v_exp_f32 v{Wr}, v{Wr}")
        a(f"v_add_f32 v{LS}, v{LS}, v{Wr}")
        a(f"v_cvt_pk_bf16_f32 v{TT}, v{Wr}, v{Wr}")
        a(f"v_lshlrev_b32 v{TT}, 16, v{TT}")
        a(f"v_sub_f32 v{TT}, v{Wr}, v{TT}")
        a(f"v_cvt_pk_bf16_f32 v{TT}, v{Wr}, v{TT}")
        a(f"ds_write_b16 v{ADPW}, v{TT}")
        a(f"ds_write_b16_d16_hi v{ADPW}, v{TT} offset:16")
        a(f"s_mov_b64 exec, s[{sEXA}:{sEXA+1}]")
        a(f"ds_read_b128 v[{AOP}:{AOP+3}], v{ADA}")
        a("s_mov_b64 exec, -1")
        zr = ZRAW
        a("s_waitcnt lgkmcnt(3)")
        for i in range(4):
            a(f"v_lshlrev_b32 v{ZR+2*i}, 16, v{zr+i}")
            a(f"v_and_b32 v{ZR+2*i+1}, s{sMASK}, v{zr+i}")
            a(f"v_lshlrev_b32 v{SR+2*i}, 16, v{zr+4+i}")
            a(f"v_and_b32 v{SR+2*i+1}, s{sMASK}, v{zr+4+i}")
        for jj in range(4):
            for k in range(2):
                j = jj * 2 + k
                r = RING + ph * 64 + 32 + j * 4
                a(f"s_waitcnt vmcnt({NIF-1})")
                for e in range(4):
                    a(f"v_cvt_f32_i32 v{TV+2*e+k}, v{r+e}")
                load(ph, 1, j, NX)
            z = ZR + 2 * jj
            sc = SR + 2 * jj
            for e in range(4):
                t = TV + 2 * e
                a(f"v_pk_add_f32 v[{t}:{t+1}], v[{t}:{t+1}], v[{z}:{z+1}] neg_lo:[0,1] neg_hi:[0,1]")
            for e in range(4 if not light else 0):
                t = TV + 2 * e
                a(f"v_cvt_pk_bf16_f32 v{B+4*e+jj}, v{t}, v{t+1}")
            for e in range(4 if not light else 0):
                t = TV + 2 * e
                a(f"v_lshlrev_b32 v{t}, 16, v{B+4*e+jj}")
                a(f"v_and_b32 v{t+1}, s{sMASK}, v{B+4*e+jj}")
            for e in range(4):
                t = TV + 2 * e
                a(f"v_pk_mul_f32 v[{t}:{t+1}], v[{t}:{t+1}], v[{sc}:{sc+1}]")
            for e in range(4):
                t = TV + 2 * e
                a(f"v_cvt_pk_bf16_f32 v{B+4*e+jj}, v{t}, v{t+1}")
        a("s_waitcnt lgkmcnt(0)")
        for e in range(4):
            a(f"v_mfma_f32_16x16x32_bf16 v[{ACC+4*e}:{ACC+4*e+3}], v[{AOP}:{AOP+3}], v[{B+4*e}:{B+4*e+3}], v[{ACC+4*e}:{ACC+4*e+3}]")
        for j in range(ahead):
            a(f"s_mov_b32 s{sOFF+j}, s{sOFF+j+1}")
    a("s_branch L_loop")

    a("L_done:")
    a("s_nop 7")
    a(f"v_add_f32_dpp v{LS}, v{LS}, v{LS} quad_perm:[1,0,3,2] row_mask:0xf bank_mask:0xf")
    a(f"v_add_f32_dpp v{LS}, v{LS}, v{LS} row_half_mirror row_mask:0xf bank_mask:0xf")
    a(f"v_add_f32_dpp v{LS}, v{LS}, v{LS} row_mirror row_mask:0xf bank_mask:0xf")
    a(f"v_mov_b32 v{X0}, v{LS}")
    a(f"v_permlane32_swap_b32 v{LS}, v{X0}")
    a(f"v_add_f32 v{LS}, v{LS}, v{X0}")
    a(f"v_bfe_u32 v{X0}, v{LANE}, 4, 1")
    a(f"v_lshl_add_u32 v{X0}, v{X0}, 4, v{PRG}")
    a(f"ds_write_b32 v{X0}, v{MX} offset:{L_ML}")
    a(f"ds_write_b32 v{X0}, v{LS} offset:{L_ML+32}")
    for e in range(4):
        a(f"v_add_f32 v{8+e}, v{ACC+4*e}, v{ACC+4*e+1}")
        a(f"v_add_f32 v{12+e}, v{ACC+4*e+2}, v{ACC+4*e+3}")
    a(f"v_lshlrev_b32 v{X1}, 4, v{LANE}")
    a(f"s_lshl_b32 s{sT0}, s3, 10")
    a(f"v_add_u32 v{X0}, s{sT0}, v{X1}")
    a("s_mov_b32 exec_hi, 0")
    a(f"ds_write_b128 v{X0}, v[8:11] offset:{L_O}")
    a(f"ds_write_b128 v{X0}, v[12:15] offset:{L_O+512}")
    a("s_mov_b64 exec, -1")
    a("s_waitcnt lgkmcnt(0)")
    if stamp:
        a(f"s_memrealtime s[{sST+6}:{sST+7}]")
        a("s_waitcnt lgkmcnt(0)")
        a("s_waitcnt vmcnt(0)")
        a(f"s_mov_b32 s{sST+4}, s{sCNT}")
        a(f"s_mov_b32 s{sST+5}, 0")
        for i in range(8):
            a(f"v_mov_b32 v{20+i}, s{sST+i}")
        a(f"s_lshl_b32 s{sT0}, s2, 2")
        a(f"s_add_u32 s{sT0}, s{sT0}, s3")
        a(f"s_lshl_b32 s{sT0}, s{sT0}, 5")
        a(f"s_add_u32 s{sT0}, s{sT0}, 0x200000")
        a(f"v_mov_b32 v28, s{sT0}")
        a("s_mov_b64 exec, 1")
        a("global_store_dwordx4 v28, v[20:23], s[22:23]")
        a("global_store_dwordx4 v28, v[24:27], s[22:23] offset:16")
        a("s_mov_b64 exec, -1")
    a("s_barrier")
    if stamp:
        a(f"s_memrealtime s[{sST}:{sST+1}]")
        a("s_waitcnt lgkmcnt(0)")
    a("s_cmp_lg_u32 s3, 0")
    a("s_cbranch_scc1 L_end")
    OB = 32
    a(f"v_lshrrev_b32 v8, 5, v{LANE}")
    a("v_lshlrev_b32 v8, 4, v8")
    a(f"ds_read_b128 v[16:19], v8 offset:{L_ML}")
    a(f"ds_read_b128 v[20:23], v8 offset:{L_ML+32}")
    for w in range(4):
        a(f"ds_read_b128 v[{OB+4*w}:{OB+4*w+3}], v{X1} offset:{L_O+w*1024}")
    a("s_mov_b32 s24, s22")
    a("s_and_b32 s25, s23, 0xffff")
    a(f"s_mov_b32 s26, {256*2048}")
    a("s_mov_b32 s27, 0x00020000")
    a(f"s_lshl_b32 s{sT0}, s2, 11")
    a(f"v_lshrrev_b32 v9, 1, v{X1}")
    a("s_waitcnt lgkmcnt(4)")
    a("v_max3_f32 v10, v16, v17, v18")
    a("v_max_f32 v10, v10, v19")
    for i in range(4):
        a(f"v_sub_f32 v{16+i}, v{16+i}, v10")
    for i in range(4):
        a(f"v_mul_f32 v{16+i}, s{sLOG2E}, v{16+i}")
    for i in range(4):
        a(f"v_exp_f32 v{16+i}, v{16+i}")
    a("v_mul_f32 v11, v16, v20")
    for i in range(1, 4):
        a(f"v_fmac_f32 v11, v{16+i}, v{20+i}")
    a("s_waitcnt lgkmcnt(0)")
    for e in range(4):
        a(f"v_mul_f32 v{12+e}, v16, v{OB+e}")
    for w in range(1, 4):
        for e in range(4):
            a(f"v_fmac_f32 v{12+e}, v{16+w}, v{OB+4*w+e}")
    a(f"buffer_store_dwordx4 v[12:15], v{X1}, s[24:27], s{sT0} offen sc1")
    a(f"buffer_store_dwordx2 v[10:11], v9, s[24:27], s{sT0} offen offset:1024 sc1")
    a(f"s_lshl_b32 s{sT1}, s{sBH}, 3")
    a(f"v_mov_b32 v16, s{sT1}")
    a("v_mov_b32 v17, 1")
    a("s_waitcnt vmcnt(0)")
    a("s_mov_b64 exec, 1")
    a("global_atomic_add v18, v16, v17, s[20:21] offset:4 sc0")
    a("s_waitcnt vmcnt(0)")
    a(f"v_readfirstlane_b32 s{sT2}, v18")
    a("s_mov_b64 exec, -1")
    if stamp:
        a(f"s_memrealtime s[{sST+2}:{sST+3}]")
        a("s_waitcnt lgkmcnt(0)")
        for i in range(4):
            a(f"v_mov_b32 v{20+i}, s{sST+i}")
        a(f"s_lshl_b32 s{sT3}, s2, 4")
        a(f"s_add_u32 s{sT3}, s{sT3}, 0x180000")
        a(f"v_mov_b32 v24, s{sT3}")
        a("s_mov_b64 exec, 1")
        a("global_store_dwordx4 v24, v[20:23], s[22:23]")
        a("s_mov_b64 exec, -1")
    a(f"s_cmp_lg_u32 s{sT2}, 7")
    a("s_cbranch_scc1 L_end")
    a(f"s_lshl_b32 s{sT0}, s{sBH}, 14")
    for p in range(8):
        a(f"buffer_load_dwordx2 v[{16+2*p}:{17+2*p}], v9, s[24:27], s{sT0} offen offset:1024 sc1")
        a(f"buffer_load_dwordx4 v[{OB+4*p}:{OB+4*p+3}], v{X1}, s[24:27], s{sT0} offen sc1")
        if p < 7:
            a(f"s_add_u32 s{sT0}, s{sT0}, 2048")
    a("s_mov_b32 s28, s18")
    a("s_and_b32 s29, s19, 0xffff")
    a("s_mov_b32 s30, 16384")
    a("s_mov_b32 s31, 0x00020000")
    a(f"s_lshl_b32 s{sT1}, s{sBH}, 9")
    a("s_waitcnt vmcnt(0)")
    a("v_max3_f32 v10, v16, v18, v20")
    a("v_max3_f32 v10, v10, v22, v24")
    a("v_max3_f32 v10, v10, v26, v28")
    a("v_max_f32 v10, v10, v30")
    for p in range(8):
        a(f"v_sub_f32 v{16+2*p}, v{16+2*p}, v10")
    for p in range(8):
        a(f"v_mul_f32 v{16+2*p}, s{sLOG2E}, v{16+2*p}")
    for p in range(8):
        a(f"v_exp_f32 v{16+2*p}, v{16+2*p}")
    a("v_mul_f32 v11, v16, v17")
    for p in range(1, 8):
        a(f"v_fmac_f32 v11, v{16+2*p}, v{17+2*p}")
    for e in range(4):
        a(f"v_mul_f32 v{12+e}, v16, v{OB+e}")
    for p in range(1, 8):
        for e in range(4):
            a(f"v_fmac_f32 v{12+e}, v{16+2*p}, v{OB+4*p+e}")
    a("v_rcp_f32 v11, v11")
    for e in range(4):
        a(f"v_mul_f32 v{12+e}, v{12+e}, v11")
    a("v_cvt_pk_bf16_f32 v12, v12, v13")
    a("v_cvt_pk_bf16_f32 v13, v14, v15")
    a(f"buffer_store_dwordx2 v[12:13], v9, s[28:31], s{sT1} offen")
    if stamp:
        a("s_waitcnt vmcnt(0)")
        a(f"s_memrealtime s[{sST+2}:{sST+3}]")
        a("s_waitcnt lgkmcnt(0)")
        a(f"v_mov_b32 v20, s{sST+2}")
        a(f"v_mov_b32 v21, s{sST+3}")
        a(f"s_lshl_b32 s{sT3}, s{sBH}, 3")
        a(f"s_add_u32 s{sT3}, s{sT3}, 0x300000")
        a(f"v_mov_b32 v24, s{sT3}")
        a("s_mov_b64 exec, 1")
        a("global_store_dwordx2 v24, v[20:21], s[22:23]")
    a("s_endpgm")

    a("L_sched:")
    a(f"v_lshlrev_b32 v2, 2, v{LANE}")
    a("v_mov_b32 v3, -1")
    a("v_mov_b32 v4, 0")
    nq = (ND + 63) // 64 + 1
    for i in range(nq):
        a(f"ds_write_b32 v2, v3 offset:{L_Q + i*256}")
    a("s_mov_b64 exec, 0xffff")
    a("ds_write_b32 v2, v4")
    a("s_mov_b64 exec, -1")
    a(f"s_lshl_b32 s{sT0}, s{sBH}, 3")
    a(f"v_mov_b32 v5, s{sT0}")
    a(f"s_mul_i32 s{sT0}, s{sBH}, {cstride}")
    a(f"s_add_u32 s{sT0}, s{sT0}, {CTR_OFF}")
    a(f"v_mov_b32 v6, s{sT0}")
    a("v_mov_b32 v12, 1")
    a(f"v_lshlrev_b32 v14, 4, v{LANE}")
    a(f"v_lshrrev_b32 v15, 3, v{LANE}")
    a(f"v_and_b32 v16, 7, v{LANE}")
    a("v_lshlrev_b32 v16, 4, v16")
    a("v_lshl_add_u32 v17, v15, 8, v16")
    a("s_waitcnt lgkmcnt(0)")
    for (srd, p) in ((sZ, 16), (sS, 14)):
        a(f"s_mov_b32 s{srd}, s{p}")
        a(f"s_and_b32 s{srd+1}, s{p+1}, 0xffff")
        a(f"s_mov_b32 s{srd+2}, 0x200000")
        a(f"s_mov_b32 s{srd+3}, 0x00020000")
    a(f"s_lshl_b32 s{sT0}, s2, 13")
    nst = (S + 7) // 8
    for i in range(nst):
        a(f"buffer_load_dwordx4 v[{32+8*i}:{35+8*i}], v14, s[{sZ}:{sZ+3}], s{sT0} offen nt")
        a(f"buffer_load_dwordx4 v[{36+8*i}:{39+8*i}], v14, s[{sS}:{sS+3}], s{sT0} offen nt")
        if i < nst - 1:
            a(f"s_add_u32 s{sT0}, s{sT0}, 1024")
    for i in range(nst):
        a(f"s_waitcnt vmcnt({2*(nst-1-i)})")
        a(f"ds_write_b128 v17, v[{32+8*i}:{35+8*i}] offset:{L_ZS + i*2048}")
        a(f"ds_write_b128 v17, v[{36+8*i}:{39+8*i}] offset:{L_ZS + i*2048 + 128}")
    a(f"s_lshl_b32 s{sHB}, s{sBH}, 16")
    a("s_waitcnt lgkmcnt(0)")
    a("s_barrier")
    a("s_mov_b64 exec, 1")
    a("global_atomic_add v13, v5, v12, s[20:21] sc0")
    a("s_waitcnt vmcnt(0)")
    a(f"v_readfirstlane_b32 s{sT0}, v13")
    a(f"s_cmp_lg_u32 s{sT0}, 0")
    a("s_cbranch_scc1 L_wait")
    a("global_atomic_swap v13, v6, v4, s[22:23] sc0")
    a("s_waitcnt vmcnt(0)")
    a("v_mov_b32 v12, 0x10000")
    a("global_atomic_add v13, v5, v12, s[20:21] sc0")
    a("s_waitcnt vmcnt(0)")
    a("s_branch L_ready")
    a("L_wait:")
    a(f"s_cmp_ge_u32 s{sT0}, 0x10000")
    a("s_cbranch_scc1 L_ready")
    a("s_sleep 127")
    a("global_atomic_add v13, v5, v4, s[20:21] sc0")
    a("s_waitcnt vmcnt(0)")
    a(f"v_readfirstlane_b32 s{sT0}, v13")
    a("s_branch L_wait")
    a("L_ready:")
    a("s_mov_b64 exec, -1")
    a(f"s_mov_b32 s{sREM}, {S}")
    a("L_sl:")
    a("ds_read_b128 v[8:11], v4")
    a("s_waitcnt lgkmcnt(0)")
    a("v_max_u32 v8, v8, v9")
    a("v_max3_u32 v8, v8, v10, v11")
    a(f"v_readfirstlane_b32 s{sT0}, v8")
    a(f"s_add_u32 s{sT0}, s{sT0}, {ahead + LA}")
    a(f"s_cmp_gt_u32 s{sT0}, s{sREM}")
    a("s_cbranch_scc1 L_claim")
    a(f"s_sleep {sleep}")
    a("s_branch L_sl")
    a("L_claim:")
    a(f"s_sub_u32 s{sT1}, s{sT0}, s{sREM}")
    a(f"s_min_u32 s{sT1}, s{sT1}, 8")
    a(f"v_mov_b32 v12, s{sT1}")
    a("s_mov_b64 exec, 1")
    a("global_atomic_add v13, v6, v12, s[22:23] sc0")
    a("s_waitcnt vmcnt(0)")
    a(f"v_readfirstlane_b32 s{sT2}, v13")
    a("s_mov_b64 exec, -1")
    a(f"v_add_u32 v8, s{sT2}, v15")
    if pool == 0:
        a("v_and_b32 v9, 7, v8")
        a("v_lshrrev_b32 v10, 3, v8")
    else:
        magic = (1 << 32) // DPR + 1
        a(f"s_mov_b32 s{sT3}, {magic}")
        a(f"v_mul_hi_u32 v9, v8, s{sT3}")
        a(f"v_mul_u32_u24 v10, {DPR}, v9")
        a("v_sub_u32 v10, v8, v10")
    a("v_lshlrev_b32 v9, 21, v9")
    a(f"v_add_u32 v10, {S}, v10")
    a("v_lshl_add_u32 v9, v10, 15, v9")
    a(f"v_mov_b32 v10, {END}")
    a(f"v_cmp_gt_u32 vcc, {ND}, v8")
    a("v_cndmask_b32 v9, v10, v9, vcc")
    a("v_lshrrev_b32 v18, 8, v9")
    a("v_add_u32 v18, v18, v16")
    a(f"s_lshl_b32 s{sT3}, s{sREM}, 8")
    a(f"v_add_u32 v19, s{sT3}, v17")
    a(f"s_sub_u32 s{sT3}, s{sREM}, {S}")
    a(f"v_add_u32 v10, s{sT3}, v15")
    a("v_lshlrev_b32 v10, 2, v10")
    a(f"v_cmp_gt_u32 vcc, s{sT1}, v15")
    a("s_mov_b64 exec, vcc")
    a(f"buffer_load_dwordx4 v[32:35], v18, s[{sZ}:{sZ+3}], s{sHB} offen nt")
    a(f"buffer_load_dwordx4 v[36:39], v18, s[{sS}:{sS+3}], s{sHB} offen nt")
    a("s_waitcnt vmcnt(0)")
    a(f"ds_write_b128 v19, v[32:35] offset:{L_ZS}")
    a(f"ds_write_b128 v19, v[36:39] offset:{L_ZS+128}")
    a(f"ds_write_b32 v10, v9 offset:{L_Q}")
    a("s_mov_b64 exec, -1")
    a(f"s_add_u32 s{sREM}, s{sREM}, s{sT1}")
    a(f"s_add_u32 s{sT2}, s{sT2}, s{sT1}")
    a(f"s_cmp_le_u32 s{sT2}, {ND}")
    a("s_cbranch_scc1 L_sl")
    a("s_waitcnt lgkmcnt(0)")
    a("L_end:")
    a("s_endpgm")
    a.pad()
    a.check_loop("L_loop")
    txt = HEADER
    txt += f"; @launch grid=(256,1,1) block=({(W_+1)*64},1,1) lds=90112\n"
    txt += '.amdgcn_target "amdgcn-amd-amdhsa--gfx950"\n.text\n'
    txt += f".globl {KN}_kernel\n.p2align 8\n.type {KN}_kernel,@function\n"
    txt += a.text()
    txt += f""".section .rodata,"a"
.p2align 6
.amdhsa_kernel {KN}_kernel
  .amdhsa_next_free_vgpr {NV}
  .amdhsa_next_free_sgpr 80
  .amdhsa_accum_offset {(NV+3)//4*4}
  .amdhsa_group_segment_fixed_size 0
  .amdhsa_kernarg_size 80
  .amdhsa_user_sgpr_count 2
  .amdhsa_user_sgpr_kernarg_segment_ptr 1
  .amdhsa_system_sgpr_workgroup_id_x 1
  .amdhsa_float_denorm_mode_32 3
.end_amdhsa_kernel
"""
    return txt


if __name__ == "__main__":
    out = sys.argv[1]
    kw = {}
    for x in sys.argv[2:]:
        k, v = x.split("=")
        kw[k] = int(v) if v.lstrip("-").isdigit() else v
    open(out, "w").write(gen(**kw))
```

```python
import sys
from asmlib import Asm
from gen_v1 import HEADER, KN


def gen(div=16, ahead=1, S=50, LA=1, pool=0, stamp=0, sleep=8, policy="nt", cstride=4352, light=0, contig=0):
    W_ = 4
    UB = 8192
    BB = UB * W_
    BPR = (2 << 20) // BB
    DPR = BPR - S
    ND = DPR * 8
    NIF = 16 * ahead
    END = 0x40000000
    L_PROG = 0
    L_ML = 64
    L_P = 128
    L_O = 1024
    L_Q = 5120
    L_ZS = 8192
    CTR_OFF = 1 << 20
    starts = [0]
    while starts[-1] < ND:
        rem = ND - starts[-1]
        starts.append(starts[-1] + max(1, min(8, -(-rem // div))))
    NCH = len(starts) - 1
    assert NCH <= 62, NCH
    a = Asm()
    VOFF, ZOFF, ADPW, ADA, QRD, PRG, MX, LS = 0, 1, 2, 3, 4, 5, 6, 7
    KZ, KS, Q0, Q1 = 8, 12, 16, 18
    KG = 20
    ZR, SR, TV, B, ACC, AOP = 36, 44, 52, 60, 76, 92
    T0, U0, Sr, Wr, Ur, TT, KP = 36, 40, 42, 50, 52, 54, 55
    LANE = 96
    X0, X1, X2, X3 = 97, 98, 99, 100
    ZRAW = 104
    RING = ZRAW + 8
    NV = RING + 64 * ahead
    sK, sV, sZ, sS = 24, 28, 32, 36
    sMASK, sB0, sEXA, sSCALE, sLOG2E = 40, 42, 44, 46, 47
    sBH, sHB, sSTAT, sREM, sCNT, sGRP = 48, 49, 50, 51, 52, 53
    sT0, sT1, sT2, sT3 = 54, 55, 56, 57
    sOFF = 58
    sZO = 61
    sF0, sF1 = 62, 63
    sST = 64

    a(f"{KN}_kernel:")
    a("s_cmp_ge_u32 s2, 256")
    a("s_cbranch_scc1 L_end")
    a("s_load_dwordx16 s[4:19], s[0:1], 0")
    a("s_load_dwordx4 s[20:23], s[0:1], 64")
    if stamp:
        a(f"s_memrealtime s[{sST}:{sST+1}]")
    a(f"v_lshrrev_b32 v{X0}, 6, v0")
    a(f"v_and_b32 v{LANE}, 63, v0")
    a(f"v_readfirstlane_b32 s3, v{X0}")
    a(f"s_lshr_b32 s{sBH}, s2, 3")
    a(f"s_mov_b32 s{sLOG2E}, 0x3fb8aa3b")
    a(f"s_cmp_eq_u32 s3, {W_}")
    a("s_cbranch_scc1 L_sched")
    a(f"v_and_b32 v{X0}, 31, v{LANE}")
    a(f"v_lshrrev_b32 v{X1}, 5, v{LANE}")
    a(f"v_lshlrev_b32 v{ZOFF}, 4, v{X1}")
    a(f"s_lshl_b32 s{sT0}, s3, 5")
    a(f"s_add_u32 s{sT0}, s{sT0}, {L_ZS}")
    a(f"v_add_u32 v{ZOFF}, s{sT0}, v{ZOFF}")
    a(f"v_lshlrev_b32 v{VOFF}, 12, v{X1}")
    a(f"v_lshl_add_u32 v{VOFF}, v{X0}, 4, v{VOFF}")
    a(f"v_lshlrev_b32 v{X0}, 3, v{X0}")
    a(f"s_lshl_b32 s{sT0}, s{sBH}, 9")
    a(f"v_add_u32 v{X0}, s{sT0}, v{X0}")
    a(f"v_lshlrev_b32 v101, 4, v{LANE}")
    a("v_add_u32 v102, 0x1000, v101")
    a(f"s_mov_b32 s{sMASK}, 0xffff0000")
    a(f"s_mov_b32 s{sB0}, 0xaaaaaaaa")
    a(f"s_mov_b32 s{sB0+1}, 0xaaaaaaaa")
    a(f"s_mov_b32 s{sEXA}, 0x00f0000f")
    a(f"s_mov_b32 s{sEXA+1}, 0x00f0000f")
    a(f"s_mov_b32 s{sSCALE}, 0x3db504f3")
    a(f"s_lshl_b32 s{sT0}, s3, 13")
    a(f"s_lshl_b32 s{sHB}, s{sBH}, 24")
    a(f"s_add_u32 s{sHB}, s{sHB}, s{sT0}")
    a(f"s_lshl_b32 s{sSTAT}, s2, 21")
    a(f"s_add_u32 s{sSTAT}, s{sSTAT}, s{sT0}")
    a(f"s_lshl_b32 s{sT1}, s3, 7")
    a(f"s_add_u32 s{sT1}, s{sT1}, {L_P}")
    a(f"v_bfe_u32 v{X2}, v{LANE}, 4, 2")
    a(f"v_lshlrev_b32 v{X2}, 5, v{X2}")
    a(f"v_and_b32 v{X3}, 1, v{LANE}")
    a(f"v_lshl_add_u32 v{X2}, v{X3}, 3, v{X2}")
    a(f"v_bfe_u32 v{X3}, v{LANE}, 3, 1")
    a(f"v_lshl_add_u32 v{X2}, v{X3}, 1, v{X2}")
    a(f"v_bfe_u32 v{X3}, v{LANE}, 2, 1")
    a(f"v_lshl_add_u32 v{X2}, v{X3}, 2, v{X2}")
    a(f"v_add_u32 v{ADPW}, s{sT1}, v{X2}")
    a(f"v_and_b32 v{X3}, 3, v{LANE}")
    a(f"v_lshl_add_u32 v{X2}, v{X1}, 2, v{X3}")
    a(f"v_lshlrev_b32 v{X2}, 4, v{X2}")
    a(f"v_add_u32 v{ADA}, s{sT1}, v{X2}")
    a(f"v_mov_b32 v{QRD}, {L_Q}")
    a(f"s_lshl_b32 s{sT1}, s3, 2")
    a(f"v_mov_b32 v{PRG}, s{sT1}")
    a(f"v_mov_b32 v{MX}, 0xff800000")
    a(f"v_mov_b32 v{LS}, 0")
    for k in range(ahead):
        a(f"s_mov_b32 s{sOFF+k}, s{sSTAT}")
        a(f"s_add_u32 s{sSTAT}, s{sSTAT}, {BB}")
    a(f"s_mov_b32 s{sREM}, {S - ahead}")
    a(f"s_mov_b32 s{sCNT}, 0")
    a(f"s_mov_b32 s{sGRP}, 2")
    a("s_waitcnt lgkmcnt(0)")
    a(f"global_load_dwordx2 v[{Q0}:{Q0+1}], v{X0}, s[4:5] nt")
    a(f"global_load_dwordx2 v[{Q1}:{Q1+1}], v{X0}, s[4:5] offset:256 nt")
    a(f"global_load_dwordx2 v[{Sr}:{Sr+1}], v{X0}, s[10:11] nt")
    a(f"global_load_dwordx2 v[{Sr+2}:{Sr+3}], v{X0}, s[10:11] offset:256 nt")
    a(f"global_load_dwordx2 v[{Sr+4}:{Sr+5}], v{X0}, s[12:13] nt")
    a(f"global_load_dwordx2 v[{Sr+6}:{Sr+7}], v{X0}, s[12:13] offset:256 nt")
    for (srd, p, n) in ((sK, 6, 0x20000000), (sV, 8, 0x20000000)):
        a(f"s_mov_b32 s{srd}, s{p}")
        a(f"s_and_b32 s{srd+1}, s{p+1}, 0xffff")
        a(f"s_mov_b32 s{srd+2}, {n}")
        a(f"s_mov_b32 s{srd+3}, 0x00020000")

    def load(ph, kv, j, so):
        r = RING + ph * 64 + kv * 32 + j * 4
        srd = sV if kv else sK
        if contig:
            a(f"buffer_load_dwordx4 v[{r}:{r+3}], v{101 + j//4}, s[{srd}:{srd+3}], s{so} offen offset:{(j%4)*1024} {policy}")
        else:
            a(f"buffer_load_dwordx4 v[{r}:{r+3}], v{VOFF}, s[{srd}:{srd+3}], s{so} offen offset:{j*512} {policy}")

    for k in range(ahead):
        for j in range(8):
            load(k, 0, j, sOFF + k)
        for j in range(8):
            load(k, 1, j, sOFF + k)
    for i in range(16):
        a(f"v_mov_b32 v{ACC+i}, 0")
    for i in range(4):
        a(f"v_mov_b32 v{AOP+i}, 0")
    a(f"s_waitcnt vmcnt({NIF})")
    for g in range(2):
        for i in range(2):
            a(f"v_lshlrev_b32 v{KG+8*g+4+2*i}, 16, v{Sr+2*g+i}")
            a(f"v_and_b32 v{KG+8*g+4+2*i+1}, s{sMASK}, v{Sr+2*g+i}")
            a(f"v_lshlrev_b32 v{KG+8*g+2*i}, 16, v{Sr+4+2*g+i}")
            a(f"v_and_b32 v{KG+8*g+2*i+1}, s{sMASK}, v{Sr+4+2*g+i}")
    if stamp:
        a(f"s_memrealtime s[{sST+2}:{sST+3}]")
        a("s_waitcnt lgkmcnt(0)")

    a("L_loop:")
    for ph in range(ahead):
        NX = sOFF + ahead
        a(f"s_cmp_ge_u32 s{sOFF}, 0x20000000")
        a("s_cbranch_scc1 L_done")
        a(f"s_add_u32 s{sCNT}, s{sCNT}, 1")
        a(f"v_mov_b32 v{X0}, s{sCNT}")
        a(f"ds_write_b32 v{PRG}, v{X0}")
        a(f"s_cmp_lg_u32 s{sREM}, 0")
        a(f"s_cbranch_scc1 L_st{ph}")
        if ahead > 1:
            a(f"s_cmp_ge_u32 s{sOFF+ahead-1}, 0x20000000")
            a(f"s_cbranch_scc1 L_en{ph}")
        a(f"L_poll{ph}:")
        a(f"ds_read_b32 v{X0}, v{QRD}")
        a("s_waitcnt lgkmcnt(0)")
        a(f"v_readfirstlane_b32 s{sT0}, v{X0}")
        a(f"s_cmp_eq_u32 s{sT0}, -1")
        a(f"s_cbranch_scc1 L_poll{ph}")
        a(f"v_add_u32 v{QRD}, 4, v{QRD}")
        a(f"s_add_u32 s{NX}, s{sT0}, s{sHB}")
        a(f"s_branch L_nx{ph}")
        if ahead > 1:
            a(f"L_en{ph}:")
            a(f"s_mov_b32 s{NX}, {END}")
            a(f"s_branch L_nx{ph}")
        a(f"L_st{ph}:")
        a(f"s_mov_b32 s{NX}, s{sSTAT}")
        a(f"s_add_u32 s{sSTAT}, s{sSTAT}, {BB}")
        a(f"s_sub_u32 s{sREM}, s{sREM}, 1")
        a(f"L_nx{ph}:")
        a(f"s_bfe_u32 s{sT0}, s{sOFF}, 0x10017")
        a(f"s_cmp_eq_u32 s{sT0}, s{sGRP}")
        a(f"s_cbranch_scc1 L_gok{ph}")
        a(f"s_mov_b32 s{sGRP}, s{sT0}")
        a(f"s_cmp_eq_u32 s{sT0}, 0")
        a(f"s_cbranch_scc1 L_g0{ph}")
        for i in range(8):
            a(f"v_mov_b32 v{KZ+i}, v{KG+8+i}")
        a(f"s_branch L_gok{ph}")
        a(f"L_g0{ph}:")
        for i in range(8):
            a(f"v_mov_b32 v{KZ+i}, v{KG+i}")
        a(f"L_gok{ph}:")
        for st in range(2):
            for jl in range(4):
                j = st * 4 + jl
                r = RING + ph * 64 + j * 4
                a(f"s_waitcnt vmcnt({NIF-1})")
                for e in range(4):
                    a(f"v_cvt_f32_i32 v{T0+e}, v{r+e}")
                load(ph, 0, j, NX)
                a(f"v_pk_add_f32 v[{T0}:{T0+1}], v[{T0}:{T0+1}], v[{KZ}:{KZ+1}] neg_lo:[0,1] neg_hi:[0,1]")
                a(f"v_pk_add_f32 v[{T0+2}:{T0+3}], v[{T0+2}:{T0+3}], v[{KZ+2}:{KZ+3}] neg_lo:[0,1] neg_hi:[0,1]")
                if not light:
                    a(f"v_cvt_pk_bf16_f32 v{U0}, v{T0}, v{T0+1}")
                    a(f"v_cvt_pk_bf16_f32 v{U0+1}, v{T0+2}, v{T0+3}")
                    a(f"v_lshlrev_b32 v{T0}, 16, v{U0}")
                    a(f"v_and_b32 v{T0+1}, s{sMASK}, v{U0}")
                    a(f"v_lshlrev_b32 v{T0+2}, 16, v{U0+1}")
                    a(f"v_and_b32 v{T0+3}, s{sMASK}, v{U0+1}")
                a(f"v_pk_mul_f32 v[{T0}:{T0+1}], v[{T0}:{T0+1}], v[{KS}:{KS+1}]")
                a(f"v_pk_mul_f32 v[{T0+2}:{T0+3}], v[{T0+2}:{T0+3}], v[{KS+2}:{KS+3}]")
                a(f"v_cvt_pk_bf16_f32 v{U0}, v{T0}, v{T0+1}")
                a(f"v_cvt_pk_bf16_f32 v{U0+1}, v{T0+2}, v{T0+3}")
                s0, s1 = Sr + jl * 2, Sr + jl * 2 + 1
                a(f"v_dot2_f32_bf16 v{s0}, v{U0}, v{Q0}, 0")
                a(f"v_dot2_f32_bf16 v{s1}, v{U0}, v{Q1}, 0")
                a(f"v_dot2_f32_bf16 v{s0}, v{U0+1}, v{Q0+1}, v{s0}")
                a(f"v_dot2_f32_bf16 v{s1}, v{U0+1}, v{Q1+1}, v{s1}")
            for jl in range(4):
                a(f"v_permlane16_swap_b32 v{Sr+jl*2}, v{Sr+jl*2+1}")
            for jl in range(4):
                a(f"v_add_f32 v{Sr+jl*2}, v{Sr+jl*2}, v{Sr+jl*2+1}")
            a(f"v_add_f32_dpp v{Wr}, v{Sr}, v{Sr} row_mirror row_mask:0xf bank_mask:0x3")
            a(f"v_add_f32_dpp v{Wr+1}, v{Sr+4}, v{Sr+4} row_mirror row_mask:0xf bank_mask:0x3")
            a(f"v_add_f32_dpp v{Wr}, v{Sr+2}, v{Sr+2} row_mirror row_mask:0xf bank_mask:0xc")
            a(f"v_add_f32_dpp v{Wr+1}, v{Sr+6}, v{Sr+6} row_mirror row_mask:0xf bank_mask:0xc")
            a(f"v_add_f32_dpp v{Ur+st}, v{Wr}, v{Wr} row_half_mirror row_mask:0xf bank_mask:0x5")
            a(f"v_add_f32_dpp v{Ur+st}, v{Wr+1}, v{Wr+1} row_half_mirror row_mask:0xf bank_mask:0xa")
        if ph == 0:
            a(f"s_cmp_lg_u32 s{sCNT}, 1")
            a("s_cbranch_scc1 L_nobar")
            a("s_barrier")
            a("L_nobar:")
        a(f"ds_read_b128 v[{ZRAW}:{ZRAW+3}], v{ZOFF}")
        a(f"ds_read_b128 v[{ZRAW+4}:{ZRAW+7}], v{ZOFF} offset:128")
        a(f"v_add_u32 v{ZOFF}, 0x100, v{ZOFF}")
        a(f"v_cndmask_b32 v{TT}, v{Ur+1}, v{Ur}, s[{sB0}:{sB0+1}]")
        a(f"v_cndmask_b32 v{KP}, v{Ur}, v{Ur+1}, s[{sB0}:{sB0+1}]")
        a(f"v_add_f32_dpp v{Wr}, v{TT}, v{KP} quad_perm:[1,0,3,2] row_mask:0xf bank_mask:0xf")
        a(f"v_add_f32_dpp v{Wr}, v{Wr}, v{Wr} quad_perm:[2,3,0,1] row_mask:0xf bank_mask:0xf")
        a(f"v_cvt_pk_bf16_f32 v{Wr}, v{Wr}, v{Wr}")
        a(f"v_lshlrev_b32 v{Wr}, 16, v{Wr}")
        a(f"v_mul_f32 v{Wr}, s{sSCALE}, v{Wr}")
        a(f"v_cvt_pk_bf16_f32 v{Wr}, v{Wr}, v{Wr}")
        a(f"v_lshlrev_b32 v{Wr}, 16, v{Wr}")
        a(f"v_cmp_gt_f32 vcc, v{Wr}, v{MX}")
        a("s_nop 1")
        a(f"s_cbranch_vccz L_nomax{ph}")
        a(f"v_max_f32_dpp v{TT}, v{Wr}, v{Wr} quad_perm:[1,0,3,2] row_mask:0xf bank_mask:0xf")
        a(f"v_max_f32_dpp v{TT}, v{TT}, v{TT} row_half_mirror row_mask:0xf bank_mask:0xf")
        a(f"v_max_f32_dpp v{TT}, v{TT}, v{TT} row_mirror row_mask:0xf bank_mask:0xf")
        a(f"v_mov_b32 v{KP}, v{TT}")
        a(f"v_permlane32_swap_b32 v{TT}, v{KP}")
        a(f"v_max3_f32 v{TT}, v{TT}, v{KP}, v{MX}")
        a(f"v_sub_f32 v{KP}, v{MX}, v{TT}")
        a(f"v_mul_f32 v{KP}, s{sLOG2E}, v{KP}")
        a(f"v_exp_f32 v{KP}, v{KP}")
        a(f"v_mov_b32 v{MX}, v{TT}")
        a(f"v_mul_f32 v{LS}, v{LS}, v{KP}")
        a(f"v_readlane_b32 s{sF0}, v{KP}, 0")
        a(f"v_readlane_b32 s{sF1}, v{KP}, 16")
        for e in range(4):
            a(f"v_mul_f32 v{ACC+4*e}, s{sF0}, v{ACC+4*e}")
            a(f"v_mul_f32 v{ACC+4*e+1}, s{sF0}, v{ACC+4*e+1}")
            a(f"v_mul_f32 v{ACC+4*e+2}, s{sF1}, v{ACC+4*e+2}")
            a(f"v_mul_f32 v{ACC+4*e+3}, s{sF1}, v{ACC+4*e+3}")
        a(f"L_nomax{ph}:")
        a(f"v_sub_f32 v{Wr}, v{Wr}, v{MX}")
        a(f"v_mul_f32 v{Wr}, s{sLOG2E}, v{Wr}")
        a(f"v_exp_f32 v{Wr}, v{Wr}")
        a(f"v_add_f32 v{LS}, v{LS}, v{Wr}")
        a(f"v_cvt_pk_bf16_f32 v{TT}, v{Wr}, v{Wr}")
        a(f"v_lshlrev_b32 v{TT}, 16, v{TT}")
        a(f"v_sub_f32 v{TT}, v{Wr}, v{TT}")
        a(f"v_cvt_pk_bf16_f32 v{TT}, v{Wr}, v{TT}")
        a(f"ds_write_b16 v{ADPW}, v{TT}")
        a(f"ds_write_b16_d16_hi v{ADPW}, v{TT} offset:16")
        a(f"s_mov_b64 exec, s[{sEXA}:{sEXA+1}]")
        a(f"ds_read_b128 v[{AOP}:{AOP+3}], v{ADA}")
        a("s_mov_b64 exec, -1")
        zr = ZRAW
        a("s_waitcnt lgkmcnt(3)")
        for i in range(4):
            a(f"v_lshlrev_b32 v{ZR+2*i}, 16, v{zr+i}")
            a(f"v_and_b32 v{ZR+2*i+1}, s{sMASK}, v{zr+i}")
            a(f"v_lshlrev_b32 v{SR+2*i}, 16, v{zr+4+i}")
            a(f"v_and_b32 v{SR+2*i+1}, s{sMASK}, v{zr+4+i}")
        for jj in range(4):
            for k in range(2):
                j = jj * 2 + k
                r = RING + ph * 64 + 32 + j * 4
                a(f"s_waitcnt vmcnt({NIF-1})")
                for e in range(4):
                    a(f"v_cvt_f32_i32 v{TV+2*e+k}, v{r+e}")
                load(ph, 1, j, NX)
            z = ZR + 2 * jj
            sc = SR + 2 * jj
            for e in range(4):
                t = TV + 2 * e
                a(f"v_pk_add_f32 v[{t}:{t+1}], v[{t}:{t+1}], v[{z}:{z+1}] neg_lo:[0,1] neg_hi:[0,1]")
            for e in range(4 if not light else 0):
                t = TV + 2 * e
                a(f"v_cvt_pk_bf16_f32 v{B+4*e+jj}, v{t}, v{t+1}")
            for e in range(4 if not light else 0):
                t = TV + 2 * e
                a(f"v_lshlrev_b32 v{t}, 16, v{B+4*e+jj}")
                a(f"v_and_b32 v{t+1}, s{sMASK}, v{B+4*e+jj}")
            for e in range(4):
                t = TV + 2 * e
                a(f"v_pk_mul_f32 v[{t}:{t+1}], v[{t}:{t+1}], v[{sc}:{sc+1}]")
            for e in range(4):
                t = TV + 2 * e
                a(f"v_cvt_pk_bf16_f32 v{B+4*e+jj}, v{t}, v{t+1}")
        a("s_waitcnt lgkmcnt(0)")
        for e in range(4):
            a(f"v_mfma_f32_16x16x32_bf16 v[{ACC+4*e}:{ACC+4*e+3}], v[{AOP}:{AOP+3}], v[{B+4*e}:{B+4*e+3}], v[{ACC+4*e}:{ACC+4*e+3}]")
        for j in range(ahead):
            a(f"s_mov_b32 s{sOFF+j}, s{sOFF+j+1}")
    a("s_branch L_loop")

    a("L_done:")
    a("s_nop 7")
    a(f"v_add_f32_dpp v{LS}, v{LS}, v{LS} quad_perm:[1,0,3,2] row_mask:0xf bank_mask:0xf")
    a(f"v_add_f32_dpp v{LS}, v{LS}, v{LS} row_half_mirror row_mask:0xf bank_mask:0xf")
    a(f"v_add_f32_dpp v{LS}, v{LS}, v{LS} row_mirror row_mask:0xf bank_mask:0xf")
    a(f"v_mov_b32 v{X0}, v{LS}")
    a(f"v_permlane32_swap_b32 v{LS}, v{X0}")
    a(f"v_add_f32 v{LS}, v{LS}, v{X0}")
    a(f"v_bfe_u32 v{X0}, v{LANE}, 4, 1")
    a(f"v_lshl_add_u32 v{X0}, v{X0}, 4, v{PRG}")
    a(f"ds_write_b32 v{X0}, v{MX} offset:{L_ML}")
    a(f"ds_write_b32 v{X0}, v{LS} offset:{L_ML+32}")
    for e in range(4):
        a(f"v_add_f32 v{8+e}, v{ACC+4*e}, v{ACC+4*e+1}")
        a(f"v_add_f32 v{12+e}, v{ACC+4*e+2}, v{ACC+4*e+3}")
    a(f"v_lshlrev_b32 v{X1}, 4, v{LANE}")
    a(f"s_lshl_b32 s{sT0}, s3, 10")
    a(f"v_add_u32 v{X0}, s{sT0}, v{X1}")
    a("s_mov_b32 exec_hi, 0")
    a(f"ds_write_b128 v{X0}, v[8:11] offset:{L_O}")
    a(f"ds_write_b128 v{X0}, v[12:15] offset:{L_O+512}")
    a("s_mov_b64 exec, -1")
    a("s_waitcnt lgkmcnt(0)")
    if stamp:
        a(f"s_memrealtime s[{sST+6}:{sST+7}]")
        a("s_waitcnt lgkmcnt(0)")
        a("s_waitcnt vmcnt(0)")
        a(f"s_mov_b32 s{sST+4}, s{sCNT}")
        a(f"s_mov_b32 s{sST+5}, 0")
        for i in range(8):
            a(f"v_mov_b32 v{20+i}, s{sST+i}")
        a(f"s_lshl_b32 s{sT0}, s2, 2")
        a(f"s_add_u32 s{sT0}, s{sT0}, s3")
        a(f"s_lshl_b32 s{sT0}, s{sT0}, 5")
        a(f"s_add_u32 s{sT0}, s{sT0}, 0x200000")
        a(f"v_mov_b32 v28, s{sT0}")
        a("s_mov_b64 exec, 1")
        a("global_store_dwordx4 v28, v[20:23], s[22:23]")
        a("global_store_dwordx4 v28, v[24:27], s[22:23] offset:16")
        a("s_mov_b64 exec, -1")
    a("s_barrier")
    if stamp:
        a(f"s_memrealtime s[{sST}:{sST+1}]")
        a("s_waitcnt lgkmcnt(0)")
    a("s_cmp_lg_u32 s3, 0")
    a("s_cbranch_scc1 L_end")
    OB = 32
    a(f"v_lshrrev_b32 v8, 5, v{LANE}")
    a("v_lshlrev_b32 v8, 4, v8")
    a(f"ds_read_b128 v[16:19], v8 offset:{L_ML}")
    a(f"ds_read_b128 v[20:23], v8 offset:{L_ML+32}")
    for w in range(4):
        a(f"ds_read_b128 v[{OB+4*w}:{OB+4*w+3}], v{X1} offset:{L_O+w*1024}")
    a("s_mov_b32 s24, s22")
    a("s_and_b32 s25, s23, 0xffff")
    a(f"s_mov_b32 s26, {256*2048}")
    a("s_mov_b32 s27, 0x00020000")
    a(f"s_lshl_b32 s{sT0}, s2, 11")
    a(f"v_lshrrev_b32 v9, 1, v{X1}")
    a("s_waitcnt lgkmcnt(4)")
    a("v_max3_f32 v10, v16, v17, v18")
    a("v_max_f32 v10, v10, v19")
    for i in range(4):
        a(f"v_sub_f32 v{16+i}, v{16+i}, v10")
    for i in range(4):
        a(f"v_mul_f32 v{16+i}, s{sLOG2E}, v{16+i}")
    for i in range(4):
        a(f"v_exp_f32 v{16+i}, v{16+i}")
    a("v_mul_f32 v11, v16, v20")
    for i in range(1, 4):
        a(f"v_fmac_f32 v11, v{16+i}, v{20+i}")
    a("s_waitcnt lgkmcnt(0)")
    for e in range(4):
        a(f"v_mul_f32 v{12+e}, v16, v{OB+e}")
    for w in range(1, 4):
        for e in range(4):
            a(f"v_fmac_f32 v{12+e}, v{16+w}, v{OB+4*w+e}")
    a(f"buffer_store_dwordx4 v[12:15], v{X1}, s[24:27], s{sT0} offen sc1")
    a(f"buffer_store_dwordx2 v[10:11], v9, s[24:27], s{sT0} offen offset:1024 sc1")
    a(f"s_lshl_b32 s{sT1}, s{sBH}, 3")
    a(f"v_mov_b32 v16, s{sT1}")
    a("v_mov_b32 v17, 1")
    a("s_waitcnt vmcnt(0)")
    a("s_mov_b64 exec, 1")
    a("global_atomic_add v18, v16, v17, s[20:21] offset:4 sc0")
    a("s_waitcnt vmcnt(0)")
    a(f"v_readfirstlane_b32 s{sT2}, v18")
    a("s_mov_b64 exec, -1")
    if stamp:
        a(f"s_memrealtime s[{sST+2}:{sST+3}]")
        a("s_waitcnt lgkmcnt(0)")
        for i in range(4):
            a(f"v_mov_b32 v{20+i}, s{sST+i}")
        a(f"s_lshl_b32 s{sT3}, s2, 4")
        a(f"s_add_u32 s{sT3}, s{sT3}, 0x180000")
        a(f"v_mov_b32 v24, s{sT3}")
        a("s_mov_b64 exec, 1")
        a("global_store_dwordx4 v24, v[20:23], s[22:23]")
        a("s_mov_b64 exec, -1")
    a(f"s_cmp_lg_u32 s{sT2}, 7")
    a("s_cbranch_scc1 L_end")
    a(f"s_lshl_b32 s{sT0}, s{sBH}, 14")
    for p in range(8):
        a(f"buffer_load_dwordx2 v[{16+2*p}:{17+2*p}], v9, s[24:27], s{sT0} offen offset:1024 sc1")
        a(f"buffer_load_dwordx4 v[{OB+4*p}:{OB+4*p+3}], v{X1}, s[24:27], s{sT0} offen sc1")
        if p < 7:
            a(f"s_add_u32 s{sT0}, s{sT0}, 2048")
    a("s_mov_b32 s28, s18")
    a("s_and_b32 s29, s19, 0xffff")
    a("s_mov_b32 s30, 16384")
    a("s_mov_b32 s31, 0x00020000")
    a(f"s_lshl_b32 s{sT1}, s{sBH}, 9")
    a("s_waitcnt vmcnt(0)")
    a("v_max3_f32 v10, v16, v18, v20")
    a("v_max3_f32 v10, v10, v22, v24")
    a("v_max3_f32 v10, v10, v26, v28")
    a("v_max_f32 v10, v10, v30")
    for p in range(8):
        a(f"v_sub_f32 v{16+2*p}, v{16+2*p}, v10")
    for p in range(8):
        a(f"v_mul_f32 v{16+2*p}, s{sLOG2E}, v{16+2*p}")
    for p in range(8):
        a(f"v_exp_f32 v{16+2*p}, v{16+2*p}")
    a("v_mul_f32 v11, v16, v17")
    for p in range(1, 8):
        a(f"v_fmac_f32 v11, v{16+2*p}, v{17+2*p}")
    for e in range(4):
        a(f"v_mul_f32 v{12+e}, v16, v{OB+e}")
    for p in range(1, 8):
        for e in range(4):
            a(f"v_fmac_f32 v{12+e}, v{16+2*p}, v{OB+4*p+e}")
    a("v_rcp_f32 v11, v11")
    for e in range(4):
        a(f"v_mul_f32 v{12+e}, v{12+e}, v11")
    a("v_cvt_pk_bf16_f32 v12, v12, v13")
    a("v_cvt_pk_bf16_f32 v13, v14, v15")
    a(f"buffer_store_dwordx2 v[12:13], v9, s[28:31], s{sT1} offen")
    if stamp:
        a("s_waitcnt vmcnt(0)")
        a(f"s_memrealtime s[{sST+2}:{sST+3}]")
        a("s_waitcnt lgkmcnt(0)")
        a(f"v_mov_b32 v20, s{sST+2}")
        a(f"v_mov_b32 v21, s{sST+3}")
        a(f"s_lshl_b32 s{sT3}, s{sBH}, 3")
        a(f"s_add_u32 s{sT3}, s{sT3}, 0x300000")
        a(f"v_mov_b32 v24, s{sT3}")
        a("s_mov_b64 exec, 1")
        a("global_store_dwordx2 v24, v[20:21], s[22:23]")
    a("s_endpgm")

    a("L_sched:")
    a(f"v_lshlrev_b32 v2, 2, v{LANE}")
    a("v_mov_b32 v3, -1")
    a("v_mov_b32 v4, 0")
    nq = (ND + 63) // 64 + 1
    for i in range(nq):
        a(f"ds_write_b32 v2, v3 offset:{L_Q + i*256}")
    a("s_mov_b64 exec, 0xffff")
    a("ds_write_b32 v2, v4")
    a("s_mov_b64 exec, -1")
    a(f"s_lshl_b32 s{sT0}, s{sBH}, 3")
    a(f"v_mov_b32 v5, s{sT0}")
    a(f"s_mul_i32 s{sT0}, s{sBH}, {cstride}")
    a(f"s_add_u32 s{sT0}, s{sT0}, {CTR_OFF}")
    a(f"v_mov_b32 v6, s{sT0}")
    a("v_mov_b32 v12, 1")
    a(f"v_lshlrev_b32 v14, 4, v{LANE}")
    a(f"v_lshrrev_b32 v15, 3, v{LANE}")
    a(f"v_and_b32 v16, 7, v{LANE}")
    a("v_lshlrev_b32 v16, 4, v16")
    a("v_lshl_add_u32 v17, v15, 8, v16")
    a("s_waitcnt lgkmcnt(0)")
    for (srd, p) in ((sZ, 16), (sS, 14)):
        a(f"s_mov_b32 s{srd}, s{p}")
        a(f"s_and_b32 s{srd+1}, s{p+1}, 0xffff")
        a(f"s_mov_b32 s{srd+2}, 0x200000")
        a(f"s_mov_b32 s{srd+3}, 0x00020000")
    a(f"s_lshl_b32 s{sT0}, s2, 13")
    nst = (S + 7) // 8
    for i in range(nst):
        a(f"buffer_load_dwordx4 v[{32+8*i}:{35+8*i}], v14, s[{sZ}:{sZ+3}], s{sT0} offen nt")
        a(f"buffer_load_dwordx4 v[{36+8*i}:{39+8*i}], v14, s[{sS}:{sS+3}], s{sT0} offen nt")
        if i < nst - 1:
            a(f"s_add_u32 s{sT0}, s{sT0}, 1024")
    for i in range(nst):
        a(f"s_waitcnt vmcnt({2*(nst-1-i)})")
        a(f"ds_write_b128 v17, v[{32+8*i}:{35+8*i}] offset:{L_ZS + i*2048}")
        a(f"ds_write_b128 v17, v[{36+8*i}:{39+8*i}] offset:{L_ZS + i*2048 + 128}")
    a(f"s_lshl_b32 s{sHB}, s{sBH}, 16")
    a(f"v_add_u32 v20, {ND - NCH}, v{LANE}")
    for c in range(NCH):
        if starts[c] != ND - NCH + c:
            a(f"s_movk_i32 s{sT1}, {starts[c]}")
            a(f"v_writelane_b32 v20, s{sT1}, {c}")
    a("s_waitcnt lgkmcnt(0)")
    a("s_barrier")
    a("s_mov_b64 exec, 1")
    a("global_atomic_add v13, v5, v12, s[20:21] sc0")
    a("s_waitcnt vmcnt(0)")
    a(f"v_readfirstlane_b32 s{sT0}, v13")
    a(f"s_cmp_lg_u32 s{sT0}, 0")
    a("s_cbranch_scc1 L_wait")
    a("global_atomic_swap v13, v6, v4, s[22:23] sc0")
    a("s_waitcnt vmcnt(0)")
    a("v_mov_b32 v12, 0x10000")
    a("global_atomic_add v13, v5, v12, s[20:21] sc0")
    a("s_waitcnt vmcnt(0)")
    a("s_branch L_ready")
    a("L_wait:")
    a(f"s_cmp_ge_u32 s{sT0}, 0x10000")
    a("s_cbranch_scc1 L_ready")
    a("s_sleep 127")
    a("global_load_dword v13, v5, s[20:21] sc1")
    a("s_waitcnt vmcnt(0)")
    a(f"v_readfirstlane_b32 s{sT0}, v13")
    a("s_branch L_wait")
    a("L_ready:")
    a("s_mov_b64 exec, -1")
    a(f"s_mov_b32 s{sREM}, {S}")
    a("L_sl:")
    a("ds_read_b128 v[8:11], v4")
    a("s_waitcnt lgkmcnt(0)")
    a("v_max_u32 v8, v8, v9")
    a("v_max3_u32 v8, v8, v10, v11")
    a(f"v_readfirstlane_b32 s{sT0}, v8")
    a(f"s_add_u32 s{sT0}, s{sT0}, {ahead + LA}")
    a(f"s_cmp_gt_u32 s{sT0}, s{sREM}")
    a("s_cbranch_scc1 L_claim")
    a(f"s_sleep {sleep}")
    a("s_branch L_sl")
    a("L_claim:")
    a("v_mov_b32 v12, 1")
    a("s_mov_b64 exec, 1")
    a("global_atomic_add v13, v6, v12, s[22:23] sc0")
    a("s_waitcnt vmcnt(0)")
    a(f"v_readfirstlane_b32 s{sT3}, v13")
    a("s_mov_b64 exec, -1")
    a(f"s_min_u32 s{sT3}, s{sT3}, {NCH}")
    a(f"v_readlane_b32 s{sT2}, v20, s{sT3}")
    a(f"s_add_u32 s{sT3}, s{sT3}, 1")
    a(f"v_readlane_b32 s{sT1}, v20, s{sT3}")
    a(f"s_sub_u32 s{sT1}, s{sT1}, s{sT2}")
    a(f"v_add_u32 v8, s{sT2}, v15")
    if pool == 0:
        a("v_and_b32 v9, 7, v8")
        a("v_lshrrev_b32 v10, 3, v8")
    else:
        magic = (1 << 32) // DPR + 1
        a(f"s_mov_b32 s{sT3}, {magic}")
        a(f"v_mul_hi_u32 v9, v8, s{sT3}")
        a(f"v_mul_u32_u24 v10, {DPR}, v9")
        a("v_sub_u32 v10, v8, v10")
    a("v_lshlrev_b32 v9, 21, v9")
    a(f"v_add_u32 v10, {S}, v10")
    a("v_lshl_add_u32 v9, v10, 15, v9")
    a(f"v_mov_b32 v10, {END}")
    a(f"v_cmp_gt_u32 vcc, {ND}, v8")
    a("v_cndmask_b32 v9, v10, v9, vcc")
    a("v_lshrrev_b32 v18, 8, v9")
    a("v_add_u32 v18, v18, v16")
    a(f"s_lshl_b32 s{sT3}, s{sREM}, 8")
    a(f"v_add_u32 v19, s{sT3}, v17")
    a(f"s_sub_u32 s{sT3}, s{sREM}, {S}")
    a(f"v_add_u32 v10, s{sT3}, v15")
    a("v_lshlrev_b32 v10, 2, v10")
    a(f"v_cmp_gt_u32 vcc, s{sT1}, v15")
    a("s_mov_b64 exec, vcc")
    a(f"buffer_load_dwordx4 v[32:35], v18, s[{sZ}:{sZ+3}], s{sHB} offen nt")
    a(f"buffer_load_dwordx4 v[36:39], v18, s[{sS}:{sS+3}], s{sHB} offen nt")
    a("s_waitcnt vmcnt(0)")
    a(f"ds_write_b128 v19, v[32:35] offset:{L_ZS}")
    a(f"ds_write_b128 v19, v[36:39] offset:{L_ZS+128}")
    a(f"ds_write_b32 v10, v9 offset:{L_Q}")
    a("s_mov_b64 exec, -1")
    a(f"s_add_u32 s{sREM}, s{sREM}, s{sT1}")
    a(f"s_add_u32 s{sT2}, s{sT2}, s{sT1}")
    a(f"s_cmp_le_u32 s{sT2}, {ND}")
    a("s_cbranch_scc1 L_sl")
    a("s_waitcnt lgkmcnt(0)")
    a("L_end:")
    a("s_endpgm")
    a.pad()
    a.check_loop("L_loop")
    txt = HEADER
    txt += f"; @launch grid=(256,1,1) block=({(W_+1)*64},1,1) lds=90112\n"
    txt += '.amdgcn_target "amdgcn-amd-amdhsa--gfx950"\n.text\n'
    txt += f".globl {KN}_kernel\n.p2align 8\n.type {KN}_kernel,@function\n"
    txt += a.text()
    txt += f""".section .rodata,"a"
.p2align 6
.amdhsa_kernel {KN}_kernel
  .amdhsa_next_free_vgpr {NV}
  .amdhsa_next_free_sgpr 80
  .amdhsa_accum_offset {(NV+3)//4*4}
  .amdhsa_group_segment_fixed_size 0
  .amdhsa_kernarg_size 80
  .amdhsa_user_sgpr_count 2
  .amdhsa_user_sgpr_kernarg_segment_ptr 1
  .amdhsa_system_sgpr_workgroup_id_x 1
  .amdhsa_float_denorm_mode_32 3
.end_amdhsa_kernel
"""
    return txt


if __name__ == "__main__":
    out = sys.argv[1]
    kw = {}
    for x in sys.argv[2:]:
        k, v = x.split("=")
        kw[k] = int(v) if v.lstrip("-").isdigit() else v
    open(out, "w").write(gen(**kw))
```

```python
import sys
from asmlib import Asm
from gen_v1 import HEADER, KN


def gen(div=16, ahead=1, S=50, LA=1, pool=0, stamp=0, sleep=8, policy="nt", cstride=4352, light=0, contig=0, prog=0, dbgt=0):
    W_ = 4
    UB = 8192
    BB = UB * W_
    BPR = (2 << 20) // BB
    DPR = BPR - S
    ND = DPR * 8
    NIF = 16 * ahead
    END = 0x40000000
    L_PROG = 0
    L_ML = 64
    L_P = 128
    L_O = 1024
    L_Q = 5120
    L_ZS = 8192
    CTR_OFF = 1 << 20
    starts = [0]
    while starts[-1] < ND:
        rem = ND - starts[-1]
        starts.append(starts[-1] + max(1, min(8, -(-rem // div))))
    NCH = len(starts) - 1
    assert NCH <= 62, NCH
    a = Asm()
    VOFF, ZOFF, ADPW, ADA, QRD, PRG, MX, LS = 0, 1, 2, 3, 4, 5, 6, 7
    KZ, KS, Q0, Q1 = 8, 12, 16, 18
    KG = 20
    ZR, SR, TV, B, ACC, AOP = 36, 44, 52, 60, 76, 92
    T0, U0, Sr, Wr, Ur, TT, KP = 36, 40, 42, 50, 52, 54, 55
    LANE = 96
    X0, X1, X2, X3 = 97, 98, 99, 100
    ZRAW = 104
    RING = ZRAW + 8
    NV = RING + 64 * ahead
    sK, sV, sZ, sS = 24, 28, 32, 36
    sMASK, sB0, sEXA, sSCALE, sLOG2E = 40, 42, 44, 46, 47
    sBH, sHB, sSTAT, sREM, sCNT, sGRP = 48, 49, 50, 51, 52, 53
    sT0, sT1, sT2, sT3 = 54, 55, 56, 57
    sOFF = 58
    sZO = 61
    sF0, sF1 = 62, 63
    sST = 64

    a(f"{KN}_kernel:")
    a("s_cmp_ge_u32 s2, 256")
    a("s_cbranch_scc1 L_end")
    a("s_load_dwordx16 s[4:19], s[0:1], 0")
    a("s_load_dwordx4 s[20:23], s[0:1], 64")
    if stamp or dbgt:
        a(f"s_memrealtime s[{sST}:{sST+1}]")
    a(f"v_lshrrev_b32 v{X0}, 6, v0")
    a(f"v_and_b32 v{LANE}, 63, v0")
    a(f"v_readfirstlane_b32 s3, v{X0}")
    a(f"s_lshr_b32 s{sBH}, s2, 3")
    a(f"s_mov_b32 s{sLOG2E}, 0x3fb8aa3b")
    a(f"s_cmp_eq_u32 s3, {W_}")
    a("s_cbranch_scc1 L_sched")
    a(f"v_and_b32 v{X0}, 31, v{LANE}")
    a(f"v_lshrrev_b32 v{X1}, 5, v{LANE}")
    a(f"v_lshlrev_b32 v{ZOFF}, 4, v{X1}")
    a(f"s_lshl_b32 s{sT0}, s3, 5")
    a(f"s_add_u32 s{sT0}, s{sT0}, {L_ZS}")
    a(f"v_add_u32 v{ZOFF}, s{sT0}, v{ZOFF}")
    a(f"v_lshlrev_b32 v{VOFF}, 12, v{X1}")
    a(f"v_lshl_add_u32 v{VOFF}, v{X0}, 4, v{VOFF}")
    a(f"v_lshlrev_b32 v{X0}, 3, v{X0}")
    a(f"s_lshl_b32 s{sT0}, s{sBH}, 9")
    a(f"v_add_u32 v{X0}, s{sT0}, v{X0}")
    a(f"v_lshlrev_b32 v101, 4, v{LANE}")
    a("v_add_u32 v102, 0x1000, v101")
    a(f"s_mov_b32 s{sMASK}, 0xffff0000")
    a(f"s_mov_b32 s{sB0}, 0xaaaaaaaa")
    a(f"s_mov_b32 s{sB0+1}, 0xaaaaaaaa")
    a(f"s_mov_b32 s{sEXA}, 0x00f0000f")
    a(f"s_mov_b32 s{sEXA+1}, 0x00f0000f")
    a(f"s_mov_b32 s{sSCALE}, 0x3db504f3")
    a(f"s_lshl_b32 s{sT0}, s3, 13")
    a(f"s_lshl_b32 s{sHB}, s{sBH}, 24")
    a(f"s_add_u32 s{sHB}, s{sHB}, s{sT0}")
    a(f"s_lshl_b32 s{sSTAT}, s2, 21")
    a(f"s_add_u32 s{sSTAT}, s{sSTAT}, s{sT0}")
    a(f"s_lshl_b32 s{sT1}, s3, 7")
    a(f"s_add_u32 s{sT1}, s{sT1}, {L_P}")
    a(f"v_bfe_u32 v{X2}, v{LANE}, 4, 2")
    a(f"v_lshlrev_b32 v{X2}, 5, v{X2}")
    a(f"v_and_b32 v{X3}, 1, v{LANE}")
    a(f"v_lshl_add_u32 v{X2}, v{X3}, 3, v{X2}")
    a(f"v_bfe_u32 v{X3}, v{LANE}, 3, 1")
    a(f"v_lshl_add_u32 v{X2}, v{X3}, 1, v{X2}")
    a(f"v_bfe_u32 v{X3}, v{LANE}, 2, 1")
    a(f"v_lshl_add_u32 v{X2}, v{X3}, 2, v{X2}")
    a(f"v_add_u32 v{ADPW}, s{sT1}, v{X2}")
    a(f"v_and_b32 v{X3}, 3, v{LANE}")
    a(f"v_lshl_add_u32 v{X2}, v{X1}, 2, v{X3}")
    a(f"v_lshlrev_b32 v{X2}, 4, v{X2}")
    a(f"v_add_u32 v{ADA}, s{sT1}, v{X2}")
    a(f"v_mov_b32 v{QRD}, {L_Q}")
    a(f"s_lshl_b32 s{sT1}, s3, 2")
    a(f"v_mov_b32 v{PRG}, s{sT1}")
    a(f"v_mov_b32 v{MX}, 0xff800000")
    a(f"v_mov_b32 v{LS}, 0")
    for k in range(ahead):
        a(f"s_mov_b32 s{sOFF+k}, s{sSTAT}")
        a(f"s_add_u32 s{sSTAT}, s{sSTAT}, {BB}")
    a(f"s_mov_b32 s{sREM}, {S - ahead}")
    a(f"s_mov_b32 s{sCNT}, 0")
    a(f"s_mov_b32 s{sGRP}, 2")
    a("s_waitcnt lgkmcnt(0)")
    a(f"global_load_dwordx2 v[{Q0}:{Q0+1}], v{X0}, s[4:5] nt")
    a(f"global_load_dwordx2 v[{Q1}:{Q1+1}], v{X0}, s[4:5] offset:256 nt")
    a(f"global_load_dwordx2 v[{Sr}:{Sr+1}], v{X0}, s[10:11] nt")
    a(f"global_load_dwordx2 v[{Sr+2}:{Sr+3}], v{X0}, s[10:11] offset:256 nt")
    a(f"global_load_dwordx2 v[{Sr+4}:{Sr+5}], v{X0}, s[12:13] nt")
    a(f"global_load_dwordx2 v[{Sr+6}:{Sr+7}], v{X0}, s[12:13] offset:256 nt")
    for (srd, p, n) in ((sK, 6, 0x20000000), (sV, 8, 0x20000000)):
        a(f"s_mov_b32 s{srd}, s{p}")
        a(f"s_and_b32 s{srd+1}, s{p+1}, 0xffff")
        a(f"s_mov_b32 s{srd+2}, {n}")
        a(f"s_mov_b32 s{srd+3}, 0x00020000")

    def load(ph, kv, j, so):
        r = RING + ph * 64 + kv * 32 + j * 4
        srd = sV if kv else sK
        if contig:
            a(f"buffer_load_dwordx4 v[{r}:{r+3}], v{101 + j//4}, s[{srd}:{srd+3}], s{so} offen offset:{(j%4)*1024} {policy}")
        else:
            a(f"buffer_load_dwordx4 v[{r}:{r+3}], v{VOFF}, s[{srd}:{srd+3}], s{so} offen offset:{j*512} {policy}")

    for k in range(ahead):
        for j in range(8):
            load(k, 0, j, sOFF + k)
        for j in range(8):
            load(k, 1, j, sOFF + k)
    for i in range(16):
        a(f"v_mov_b32 v{ACC+i}, 0")
    for i in range(4):
        a(f"v_mov_b32 v{AOP+i}, 0")
    a(f"s_waitcnt vmcnt({NIF})")
    for g in range(2):
        for i in range(2):
            a(f"v_lshlrev_b32 v{KG+8*g+4+2*i}, 16, v{Sr+2*g+i}")
            a(f"v_and_b32 v{KG+8*g+4+2*i+1}, s{sMASK}, v{Sr+2*g+i}")
            a(f"v_lshlrev_b32 v{KG+8*g+2*i}, 16, v{Sr+4+2*g+i}")
            a(f"v_and_b32 v{KG+8*g+2*i+1}, s{sMASK}, v{Sr+4+2*g+i}")
    if stamp:
        a(f"s_memrealtime s[{sST+2}:{sST+3}]")
        a("s_waitcnt lgkmcnt(0)")

    a("L_loop:")
    for ph in range(ahead):
        NX = sOFF + ahead
        a(f"s_cmp_ge_u32 s{sOFF}, 0x20000000")
        a("s_cbranch_scc1 L_done")
        a(f"s_add_u32 s{sCNT}, s{sCNT}, 1")
        if prog:
            a("s_memrealtime s[72:73]")
            a("s_memtime s[74:75]")
        a(f"v_mov_b32 v{X0}, s{sCNT}")
        a(f"ds_write_b32 v{PRG}, v{X0}")
        a(f"s_cmp_lg_u32 s{sREM}, 0")
        a(f"s_cbranch_scc1 L_st{ph}")
        if ahead > 1:
            a(f"s_cmp_ge_u32 s{sOFF+ahead-1}, 0x20000000")
            a(f"s_cbranch_scc1 L_en{ph}")
        a(f"L_poll{ph}:")
        a(f"ds_read_b32 v{X0}, v{QRD}")
        a("s_waitcnt lgkmcnt(0)")
        a(f"v_readfirstlane_b32 s{sT0}, v{X0}")
        a(f"s_cmp_eq_u32 s{sT0}, -1")
        a(f"s_cbranch_scc1 L_poll{ph}")
        a(f"v_add_u32 v{QRD}, 4, v{QRD}")
        a(f"s_add_u32 s{NX}, s{sT0}, s{sHB}")
        a(f"s_branch L_nx{ph}")
        if ahead > 1:
            a(f"L_en{ph}:")
            a(f"s_mov_b32 s{NX}, {END}")
            a(f"s_branch L_nx{ph}")
        a(f"L_st{ph}:")
        a(f"s_mov_b32 s{NX}, s{sSTAT}")
        a(f"s_add_u32 s{sSTAT}, s{sSTAT}, {BB}")
        a(f"s_sub_u32 s{sREM}, s{sREM}, 1")
        a(f"L_nx{ph}:")
        a(f"s_bfe_u32 s{sT0}, s{sOFF}, 0x10017")
        a(f"s_cmp_eq_u32 s{sT0}, s{sGRP}")
        a(f"s_cbranch_scc1 L_gok{ph}")
        a(f"s_mov_b32 s{sGRP}, s{sT0}")
        a(f"s_cmp_eq_u32 s{sT0}, 0")
        a(f"s_cbranch_scc1 L_g0{ph}")
        for i in range(8):
            a(f"v_mov_b32 v{KZ+i}, v{KG+8+i}")
        a(f"s_branch L_gok{ph}")
        a(f"L_g0{ph}:")
        for i in range(8):
            a(f"v_mov_b32 v{KZ+i}, v{KG+i}")
        a(f"L_gok{ph}:")
        for st in range(2):
            for jl in range(4):
                j = st * 4 + jl
                r = RING + ph * 64 + j * 4
                a(f"s_waitcnt vmcnt({NIF-1})")
                for e in range(4):
                    a(f"v_cvt_f32_i32 v{T0+e}, v{r+e}")
                load(ph, 0, j, NX)
                a(f"v_pk_add_f32 v[{T0}:{T0+1}], v[{T0}:{T0+1}], v[{KZ}:{KZ+1}] neg_lo:[0,1] neg_hi:[0,1]")
                a(f"v_pk_add_f32 v[{T0+2}:{T0+3}], v[{T0+2}:{T0+3}], v[{KZ+2}:{KZ+3}] neg_lo:[0,1] neg_hi:[0,1]")
                if not light:
                    a(f"v_cvt_pk_bf16_f32 v{U0}, v{T0}, v{T0+1}")
                    a(f"v_cvt_pk_bf16_f32 v{U0+1}, v{T0+2}, v{T0+3}")
                    a(f"v_lshlrev_b32 v{T0}, 16, v{U0}")
                    a(f"v_and_b32 v{T0+1}, s{sMASK}, v{U0}")
                    a(f"v_lshlrev_b32 v{T0+2}, 16, v{U0+1}")
                    a(f"v_and_b32 v{T0+3}, s{sMASK}, v{U0+1}")
                a(f"v_pk_mul_f32 v[{T0}:{T0+1}], v[{T0}:{T0+1}], v[{KS}:{KS+1}]")
                a(f"v_pk_mul_f32 v[{T0+2}:{T0+3}], v[{T0+2}:{T0+3}], v[{KS+2}:{KS+3}]")
                a(f"v_cvt_pk_bf16_f32 v{U0}, v{T0}, v{T0+1}")
                a(f"v_cvt_pk_bf16_f32 v{U0+1}, v{T0+2}, v{T0+3}")
                s0, s1 = Sr + jl * 2, Sr + jl * 2 + 1
                a(f"v_dot2_f32_bf16 v{s0}, v{U0}, v{Q0}, 0")
                a(f"v_dot2_f32_bf16 v{s1}, v{U0}, v{Q1}, 0")
                a(f"v_dot2_f32_bf16 v{s0}, v{U0+1}, v{Q0+1}, v{s0}")
                a(f"v_dot2_f32_bf16 v{s1}, v{U0+1}, v{Q1+1}, v{s1}")
            for jl in range(4):
                a(f"v_permlane16_swap_b32 v{Sr+jl*2}, v{Sr+jl*2+1}")
            for jl in range(4):
                a(f"v_add_f32 v{Sr+jl*2}, v{Sr+jl*2}, v{Sr+jl*2+1}")
            a(f"v_add_f32_dpp v{Wr}, v{Sr}, v{Sr} row_mirror row_mask:0xf bank_mask:0x3")
            a(f"v_add_f32_dpp v{Wr+1}, v{Sr+4}, v{Sr+4} row_mirror row_mask:0xf bank_mask:0x3")
            a(f"v_add_f32_dpp v{Wr}, v{Sr+2}, v{Sr+2} row_mirror row_mask:0xf bank_mask:0xc")
            a(f"v_add_f32_dpp v{Wr+1}, v{Sr+6}, v{Sr+6} row_mirror row_mask:0xf bank_mask:0xc")
            a(f"v_add_f32_dpp v{Ur+st}, v{Wr}, v{Wr} row_half_mirror row_mask:0xf bank_mask:0x5")
            a(f"v_add_f32_dpp v{Ur+st}, v{Wr+1}, v{Wr+1} row_half_mirror row_mask:0xf bank_mask:0xa")
        if ph == 0:
            a(f"s_cmp_lg_u32 s{sCNT}, 1")
            a("s_cbranch_scc1 L_nobar")
            a("s_barrier")
            a("L_nobar:")
        a(f"ds_read_b128 v[{ZRAW}:{ZRAW+3}], v{ZOFF}")
        a(f"ds_read_b128 v[{ZRAW+4}:{ZRAW+7}], v{ZOFF} offset:128")
        a(f"v_add_u32 v{ZOFF}, 0x100, v{ZOFF}")
        a(f"v_cndmask_b32 v{TT}, v{Ur+1}, v{Ur}, s[{sB0}:{sB0+1}]")
        a(f"v_cndmask_b32 v{KP}, v{Ur}, v{Ur+1}, s[{sB0}:{sB0+1}]")
        a(f"v_add_f32_dpp v{Wr}, v{TT}, v{KP} quad_perm:[1,0,3,2] row_mask:0xf bank_mask:0xf")
        a(f"v_add_f32_dpp v{Wr}, v{Wr}, v{Wr} quad_perm:[2,3,0,1] row_mask:0xf bank_mask:0xf")
        a(f"v_cvt_pk_bf16_f32 v{Wr}, v{Wr}, v{Wr}")
        a(f"v_lshlrev_b32 v{Wr}, 16, v{Wr}")
        a(f"v_mul_f32 v{Wr}, s{sSCALE}, v{Wr}")
        a(f"v_cvt_pk_bf16_f32 v{Wr}, v{Wr}, v{Wr}")
        a(f"v_lshlrev_b32 v{Wr}, 16, v{Wr}")
        a(f"v_cmp_gt_f32 vcc, v{Wr}, v{MX}")
        a("s_nop 1")
        a(f"s_cbranch_vccz L_nomax{ph}")
        a(f"v_max_f32_dpp v{TT}, v{Wr}, v{Wr} quad_perm:[1,0,3,2] row_mask:0xf bank_mask:0xf")
        a(f"v_max_f32_dpp v{TT}, v{TT}, v{TT} row_half_mirror row_mask:0xf bank_mask:0xf")
        a(f"v_max_f32_dpp v{TT}, v{TT}, v{TT} row_mirror row_mask:0xf bank_mask:0xf")
        a(f"v_mov_b32 v{KP}, v{TT}")
        a(f"v_permlane32_swap_b32 v{TT}, v{KP}")
        a(f"v_max3_f32 v{TT}, v{TT}, v{KP}, v{MX}")
        a(f"v_sub_f32 v{KP}, v{MX}, v{TT}")
        a(f"v_mul_f32 v{KP}, s{sLOG2E}, v{KP}")
        a(f"v_exp_f32 v{KP}, v{KP}")
        a(f"v_mov_b32 v{MX}, v{TT}")
        a(f"v_mul_f32 v{LS}, v{LS}, v{KP}")
        a(f"v_readlane_b32 s{sF0}, v{KP}, 0")
        a(f"v_readlane_b32 s{sF1}, v{KP}, 16")
        for e in range(4):
            a(f"v_mul_f32 v{ACC+4*e}, s{sF0}, v{ACC+4*e}")
            a(f"v_mul_f32 v{ACC+4*e+1}, s{sF0}, v{ACC+4*e+1}")
            a(f"v_mul_f32 v{ACC+4*e+2}, s{sF1}, v{ACC+4*e+2}")
            a(f"v_mul_f32 v{ACC+4*e+3}, s{sF1}, v{ACC+4*e+3}")
        a(f"L_nomax{ph}:")
        a(f"v_sub_f32 v{Wr}, v{Wr}, v{MX}")
        a(f"v_mul_f32 v{Wr}, s{sLOG2E}, v{Wr}")
        a(f"v_exp_f32 v{Wr}, v{Wr}")
        a(f"v_add_f32 v{LS}, v{LS}, v{Wr}")
        a(f"v_cvt_pk_bf16_f32 v{TT}, v{Wr}, v{Wr}")
        a(f"v_lshlrev_b32 v{TT}, 16, v{TT}")
        a(f"v_sub_f32 v{TT}, v{Wr}, v{TT}")
        a(f"v_cvt_pk_bf16_f32 v{TT}, v{Wr}, v{TT}")
        a(f"ds_write_b16 v{ADPW}, v{TT}")
        a(f"ds_write_b16_d16_hi v{ADPW}, v{TT} offset:16")
        a(f"s_mov_b64 exec, s[{sEXA}:{sEXA+1}]")
        a(f"ds_read_b128 v[{AOP}:{AOP+3}], v{ADA}")
        a("s_mov_b64 exec, -1")
        zr = ZRAW
        a("s_waitcnt lgkmcnt(3)")
        for i in range(4):
            a(f"v_lshlrev_b32 v{ZR+2*i}, 16, v{zr+i}")
            a(f"v_and_b32 v{ZR+2*i+1}, s{sMASK}, v{zr+i}")
            a(f"v_lshlrev_b32 v{SR+2*i}, 16, v{zr+4+i}")
            a(f"v_and_b32 v{SR+2*i+1}, s{sMASK}, v{zr+4+i}")
        for jj in range(4):
            for k in range(2):
                j = jj * 2 + k
                r = RING + ph * 64 + 32 + j * 4
                a(f"s_waitcnt vmcnt({NIF-1})")
                for e in range(4):
                    a(f"v_cvt_f32_i32 v{TV+2*e+k}, v{r+e}")
                load(ph, 1, j, NX)
            z = ZR + 2 * jj
            sc = SR + 2 * jj
            for e in range(4):
                t = TV + 2 * e
                a(f"v_pk_add_f32 v[{t}:{t+1}], v[{t}:{t+1}], v[{z}:{z+1}] neg_lo:[0,1] neg_hi:[0,1]")
            for e in range(4 if not light else 0):
                t = TV + 2 * e
                a(f"v_cvt_pk_bf16_f32 v{B+4*e+jj}, v{t}, v{t+1}")
            for e in range(4 if not light else 0):
                t = TV + 2 * e
                a(f"v_lshlrev_b32 v{t}, 16, v{B+4*e+jj}")
                a(f"v_and_b32 v{t+1}, s{sMASK}, v{B+4*e+jj}")
            for e in range(4):
                t = TV + 2 * e
                a(f"v_pk_mul_f32 v[{t}:{t+1}], v[{t}:{t+1}], v[{sc}:{sc+1}]")
            for e in range(4):
                t = TV + 2 * e
                a(f"v_cvt_pk_bf16_f32 v{B+4*e+jj}, v{t}, v{t+1}")
        a("s_waitcnt lgkmcnt(0)")
        if prog:
            a(f"s_lshr_b32 m0, s{sCNT}, 1")
            a("s_nop 1")
            a(f"v_writelane_b32 v102, s72, m0")
            a(f"v_writelane_b32 v103, s74, m0")
        for e in range(4):
            a(f"v_mfma_f32_16x16x32_bf16 v[{ACC+4*e}:{ACC+4*e+3}], v[{AOP}:{AOP+3}], v[{B+4*e}:{B+4*e+3}], v[{ACC+4*e}:{ACC+4*e+3}]")
        for j in range(ahead):
            a(f"s_mov_b32 s{sOFF+j}, s{sOFF+j+1}")
    a("s_branch L_loop")

    a("L_done:")
    a("s_nop 7")
    a(f"v_add_f32_dpp v{LS}, v{LS}, v{LS} quad_perm:[1,0,3,2] row_mask:0xf bank_mask:0xf")
    a(f"v_add_f32_dpp v{LS}, v{LS}, v{LS} row_half_mirror row_mask:0xf bank_mask:0xf")
    a(f"v_add_f32_dpp v{LS}, v{LS}, v{LS} row_mirror row_mask:0xf bank_mask:0xf")
    a(f"v_mov_b32 v{X0}, v{LS}")
    a(f"v_permlane32_swap_b32 v{LS}, v{X0}")
    a(f"v_add_f32 v{LS}, v{LS}, v{X0}")
    a(f"v_bfe_u32 v{X0}, v{LANE}, 4, 1")
    a(f"v_lshl_add_u32 v{X0}, v{X0}, 4, v{PRG}")
    a(f"ds_write_b32 v{X0}, v{MX} offset:{L_ML}")
    a(f"ds_write_b32 v{X0}, v{LS} offset:{L_ML+32}")
    for e in range(4):
        a(f"v_add_f32 v{8+e}, v{ACC+4*e}, v{ACC+4*e+1}")
        a(f"v_add_f32 v{12+e}, v{ACC+4*e+2}, v{ACC+4*e+3}")
    a(f"v_lshlrev_b32 v{X1}, 4, v{LANE}")
    a(f"s_lshl_b32 s{sT0}, s3, 10")
    a(f"v_add_u32 v{X0}, s{sT0}, v{X1}")
    a("s_mov_b32 exec_hi, 0")
    a(f"ds_write_b128 v{X0}, v[8:11] offset:{L_O}")
    a(f"ds_write_b128 v{X0}, v[12:15] offset:{L_O+512}")
    a("s_mov_b64 exec, -1")
    a("s_waitcnt lgkmcnt(0)")
    if stamp:
        a(f"s_memrealtime s[{sST+6}:{sST+7}]")
        a("s_waitcnt lgkmcnt(0)")
        a("s_waitcnt vmcnt(0)")
        a(f"s_mov_b32 s{sST+4}, s{sCNT}")
        a(f"s_mov_b32 s{sST+5}, 0")
        for i in range(8):
            a(f"v_mov_b32 v{20+i}, s{sST+i}")
        a(f"s_lshl_b32 s{sT0}, s2, 2")
        a(f"s_add_u32 s{sT0}, s{sT0}, s3")
        a(f"s_lshl_b32 s{sT0}, s{sT0}, 5")
        a(f"s_add_u32 s{sT0}, s{sT0}, 0x200000")
        a(f"v_mov_b32 v28, s{sT0}")
        a("s_mov_b64 exec, 1")
        a("global_store_dwordx4 v28, v[20:23], s[22:23]")
        a("global_store_dwordx4 v28, v[24:27], s[22:23] offset:16")
        a("s_mov_b64 exec, -1")
        if prog:
            a(f"s_lshl_b32 s{sT0}, s2, 2")
            a(f"s_add_u32 s{sT0}, s{sT0}, s3")
            a(f"s_lshl_b32 s{sT0}, s{sT0}, 9")
            a(f"s_add_u32 s{sT0}, s{sT0}, 0x400000")
            a(f"v_lshlrev_b32 v28, 3, v{LANE}")
            a(f"v_add_u32 v28, s{sT0}, v28")
            a("global_store_dwordx2 v28, v[102:103], s[22:23]")
    a("s_barrier")
    if stamp:
        a(f"s_memrealtime s[{sST}:{sST+1}]")
        a("s_waitcnt lgkmcnt(0)")
    a("s_cmp_lg_u32 s3, 0")
    a("s_cbranch_scc1 L_end")
    OB = 32
    a(f"v_lshrrev_b32 v8, 5, v{LANE}")
    a("v_lshlrev_b32 v8, 4, v8")
    a(f"ds_read_b128 v[16:19], v8 offset:{L_ML}")
    a(f"ds_read_b128 v[20:23], v8 offset:{L_ML+32}")
    for w in range(4):
        a(f"ds_read_b128 v[{OB+4*w}:{OB+4*w+3}], v{X1} offset:{L_O+w*1024}")
    a("s_mov_b32 s24, s22")
    a("s_and_b32 s25, s23, 0xffff")
    a(f"s_mov_b32 s26, {256*2048}")
    a("s_mov_b32 s27, 0x00020000")
    a(f"s_lshl_b32 s{sT0}, s2, 11")
    a(f"v_lshrrev_b32 v9, 1, v{X1}")
    a("s_waitcnt lgkmcnt(4)")
    a("v_max3_f32 v10, v16, v17, v18")
    a("v_max_f32 v10, v10, v19")
    for i in range(4):
        a(f"v_sub_f32 v{16+i}, v{16+i}, v10")
    for i in range(4):
        a(f"v_mul_f32 v{16+i}, s{sLOG2E}, v{16+i}")
    for i in range(4):
        a(f"v_exp_f32 v{16+i}, v{16+i}")
    a("v_mul_f32 v11, v16, v20")
    for i in range(1, 4):
        a(f"v_fmac_f32 v11, v{16+i}, v{20+i}")
    a("s_waitcnt lgkmcnt(0)")
    for e in range(4):
        a(f"v_mul_f32 v{12+e}, v16, v{OB+e}")
    for w in range(1, 4):
        for e in range(4):
            a(f"v_fmac_f32 v{12+e}, v{16+w}, v{OB+4*w+e}")
    a(f"buffer_store_dwordx4 v[12:15], v{X1}, s[24:27], s{sT0} offen sc1")
    a(f"buffer_store_dwordx2 v[10:11], v9, s[24:27], s{sT0} offen offset:1024 sc1")
    a(f"s_lshl_b32 s{sT1}, s{sBH}, 3")
    a(f"v_mov_b32 v16, s{sT1}")
    a("v_mov_b32 v17, 1")
    a("s_waitcnt vmcnt(0)")
    a("s_mov_b64 exec, 1")
    a("global_atomic_add v18, v16, v17, s[20:21] offset:4 sc0")
    a("s_waitcnt vmcnt(0)")
    a(f"v_readfirstlane_b32 s{sT2}, v18")
    if dbgt:
        a(f"s_bfe_u32 s{sT3}, s2, 0x10002")
        a(f"s_and_b32 s76, s{sBH}, 1")
        a(f"s_cmp_lg_u32 s{sT3}, s76")
        a("s_cbranch_scc1 L_nodbg")
        a(f"s_and_b32 s{sT3}, s2, 3")
        a(f"s_lshl_b32 s{sT3}, s{sT3}, 3")
        a(f"s_lshl_b32 s{sT3}, s{sCNT}, s{sT3}")
        a(f"v_mov_b32 v17, s{sT3}")
        a("global_atomic_add v16, v17, s[20:21]")
        a("L_nodbg:")
    a("s_mov_b64 exec, -1")
    if stamp:
        a(f"s_memrealtime s[{sST+2}:{sST+3}]")
        a("s_waitcnt lgkmcnt(0)")
        for i in range(4):
            a(f"v_mov_b32 v{20+i}, s{sST+i}")
        a(f"s_lshl_b32 s{sT3}, s2, 4")
        a(f"s_add_u32 s{sT3}, s{sT3}, 0x180000")
        a(f"v_mov_b32 v24, s{sT3}")
        a("s_mov_b64 exec, 1")
        a("global_store_dwordx4 v24, v[20:23], s[22:23]")
        a("s_mov_b64 exec, -1")
    a(f"s_cmp_lg_u32 s{sT2}, 7")
    a("s_cbranch_scc1 L_end")
    a(f"s_lshl_b32 s{sT0}, s{sBH}, 14")
    for p in range(8):
        a(f"buffer_load_dwordx2 v[{16+2*p}:{17+2*p}], v9, s[24:27], s{sT0} offen offset:1024 sc1")
        a(f"buffer_load_dwordx4 v[{OB+4*p}:{OB+4*p+3}], v{X1}, s[24:27], s{sT0} offen sc1")
        if p < 7:
            a(f"s_add_u32 s{sT0}, s{sT0}, 2048")
    a("s_mov_b32 s28, s18")
    a("s_and_b32 s29, s19, 0xffff")
    a("s_mov_b32 s30, 16384")
    a("s_mov_b32 s31, 0x00020000")
    a(f"s_lshl_b32 s{sT1}, s{sBH}, 9")
    a("s_waitcnt vmcnt(0)")
    a("v_max3_f32 v10, v16, v18, v20")
    a("v_max3_f32 v10, v10, v22, v24")
    a("v_max3_f32 v10, v10, v26, v28")
    a("v_max_f32 v10, v10, v30")
    for p in range(8):
        a(f"v_sub_f32 v{16+2*p}, v{16+2*p}, v10")
    for p in range(8):
        a(f"v_mul_f32 v{16+2*p}, s{sLOG2E}, v{16+2*p}")
    for p in range(8):
        a(f"v_exp_f32 v{16+2*p}, v{16+2*p}")
    a("v_mul_f32 v11, v16, v17")
    for p in range(1, 8):
        a(f"v_fmac_f32 v11, v{16+2*p}, v{17+2*p}")
    for e in range(4):
        a(f"v_mul_f32 v{12+e}, v16, v{OB+e}")
    for p in range(1, 8):
        for e in range(4):
            a(f"v_fmac_f32 v{12+e}, v{16+2*p}, v{OB+4*p+e}")
    a("v_rcp_f32 v11, v11")
    for e in range(4):
        a(f"v_mul_f32 v{12+e}, v{12+e}, v11")
    a("v_cvt_pk_bf16_f32 v12, v12, v13")
    a("v_cvt_pk_bf16_f32 v13, v14, v15")
    a(f"buffer_store_dwordx2 v[12:13], v9, s[28:31], s{sT1} offen")
    if dbgt:
        a("s_waitcnt vmcnt(0)")
        a(f"s_memrealtime s[{sST+2}:{sST+3}]")
        a("s_waitcnt lgkmcnt(0)")
        a(f"s_sub_u32 s{sT0}, s{sST+2}, s{sST}")
        a(f"v_mov_b32 v20, s{sT0}")
        a(f"s_lshl_b32 s{sT1}, s{sBH}, 3")
        a(f"v_mov_b32 v16, s{sT1}")
        a("s_mov_b64 exec, 1")
        a("global_store_dword v16, v20, s[20:21] offset:4")
    if stamp:
        a("s_waitcnt vmcnt(0)")
        a(f"s_memrealtime s[{sST+2}:{sST+3}]")
        a("s_waitcnt lgkmcnt(0)")
        a(f"v_mov_b32 v20, s{sST+2}")
        a(f"v_mov_b32 v21, s{sST+3}")
        a(f"s_lshl_b32 s{sT3}, s{sBH}, 3")
        a(f"s_add_u32 s{sT3}, s{sT3}, 0x300000")
        a(f"v_mov_b32 v24, s{sT3}")
        a("s_mov_b64 exec, 1")
        a("global_store_dwordx2 v24, v[20:21], s[22:23]")
    a("s_endpgm")

    a("L_sched:")
    a(f"v_lshlrev_b32 v2, 2, v{LANE}")
    a("v_mov_b32 v3, -1")
    a("v_mov_b32 v4, 0")
    nq = (ND + 63) // 64 + 1
    for i in range(nq):
        a(f"ds_write_b32 v2, v3 offset:{L_Q + i*256}")
    a("s_mov_b64 exec, 0xffff")
    a("ds_write_b32 v2, v4")
    a("s_mov_b64 exec, -1")
    a(f"s_lshl_b32 s{sT0}, s{sBH}, 3")
    a(f"v_mov_b32 v5, s{sT0}")
    a(f"s_mul_i32 s{sT0}, s{sBH}, {cstride}")
    a(f"s_add_u32 s{sT0}, s{sT0}, {CTR_OFF}")
    a(f"v_mov_b32 v6, s{sT0}")
    a("v_mov_b32 v12, 1")
    a(f"v_lshlrev_b32 v14, 4, v{LANE}")
    a(f"v_lshrrev_b32 v15, 3, v{LANE}")
    a(f"v_and_b32 v16, 7, v{LANE}")
    a("v_lshlrev_b32 v16, 4, v16")
    a("v_lshl_add_u32 v17, v15, 8, v16")
    a("s_waitcnt lgkmcnt(0)")
    for (srd, p) in ((sZ, 16), (sS, 14)):
        a(f"s_mov_b32 s{srd}, s{p}")
        a(f"s_and_b32 s{srd+1}, s{p+1}, 0xffff")
        a(f"s_mov_b32 s{srd+2}, 0x200000")
        a(f"s_mov_b32 s{srd+3}, 0x00020000")
    a(f"s_lshl_b32 s{sT0}, s2, 13")
    nst = (S + 7) // 8
    for i in range(nst):
        a(f"buffer_load_dwordx4 v[{32+8*i}:{35+8*i}], v14, s[{sZ}:{sZ+3}], s{sT0} offen nt")
        a(f"buffer_load_dwordx4 v[{36+8*i}:{39+8*i}], v14, s[{sS}:{sS+3}], s{sT0} offen nt")
        if i < nst - 1:
            a(f"s_add_u32 s{sT0}, s{sT0}, 1024")
    for i in range(nst):
        a(f"s_waitcnt vmcnt({2*(nst-1-i)})")
        a(f"ds_write_b128 v17, v[{32+8*i}:{35+8*i}] offset:{L_ZS + i*2048}")
        a(f"ds_write_b128 v17, v[{36+8*i}:{39+8*i}] offset:{L_ZS + i*2048 + 128}")
    a(f"s_lshl_b32 s{sHB}, s{sBH}, 16")
    a(f"v_add_u32 v20, {ND - NCH}, v{LANE}")
    for c in range(NCH):
        if starts[c] != ND - NCH + c:
            a(f"s_movk_i32 s{sT1}, {starts[c]}")
            a(f"v_writelane_b32 v20, s{sT1}, {c}")
    a("s_waitcnt lgkmcnt(0)")
    a("s_barrier")
    a("s_mov_b64 exec, 1")
    a("global_atomic_add v13, v5, v12, s[20:21] sc0")
    a("s_waitcnt vmcnt(0)")
    a(f"v_readfirstlane_b32 s{sT0}, v13")
    a(f"s_cmp_lg_u32 s{sT0}, 0")
    a("s_cbranch_scc1 L_wait")
    a("global_atomic_swap v13, v6, v4, s[22:23] sc0")
    a("s_waitcnt vmcnt(0)")
    a("v_mov_b32 v12, 0x10000")
    a("global_atomic_add v13, v5, v12, s[20:21] sc0")
    a("s_waitcnt vmcnt(0)")
    a("s_branch L_ready")
    a("L_wait:")
    a(f"s_cmp_ge_u32 s{sT0}, 0x10000")
    a("s_cbranch_scc1 L_ready")
    a("s_sleep 127")
    a("global_load_dword v13, v5, s[20:21] sc1")
    a("s_waitcnt vmcnt(0)")
    a(f"v_readfirstlane_b32 s{sT0}, v13")
    a("s_branch L_wait")
    a("L_ready:")
    a("s_mov_b64 exec, -1")
    a(f"s_mov_b32 s{sREM}, {S}")
    a("L_sl:")
    a("ds_read_b128 v[8:11], v4")
    a("s_waitcnt lgkmcnt(0)")
    a("v_max_u32 v8, v8, v9")
    a("v_max3_u32 v8, v8, v10, v11")
    a(f"v_readfirstlane_b32 s{sT0}, v8")
    a(f"s_add_u32 s{sT0}, s{sT0}, {ahead + LA}")
    a(f"s_cmp_gt_u32 s{sT0}, s{sREM}")
    a("s_cbranch_scc1 L_claim")
    a(f"s_sleep {sleep}")
    a("s_branch L_sl")
    a("L_claim:")
    a("v_mov_b32 v12, 1")
    a("s_mov_b64 exec, 1")
    a("global_atomic_add v13, v6, v12, s[22:23] sc0")
    a("s_waitcnt vmcnt(0)")
    a(f"v_readfirstlane_b32 s{sT3}, v13")
    a("s_mov_b64 exec, -1")
    a(f"s_min_u32 s{sT3}, s{sT3}, {NCH}")
    a(f"v_readlane_b32 s{sT2}, v20, s{sT3}")
    a(f"s_add_u32 s{sT3}, s{sT3}, 1")
    a(f"v_readlane_b32 s{sT1}, v20, s{sT3}")
    a(f"s_sub_u32 s{sT1}, s{sT1}, s{sT2}")
    a(f"v_add_u32 v8, s{sT2}, v15")
    if pool == 0:
        a("v_and_b32 v9, 7, v8")
        a("v_lshrrev_b32 v10, 3, v8")
    else:
        magic = (1 << 32) // DPR + 1
        a(f"s_mov_b32 s{sT3}, {magic}")
        a(f"v_mul_hi_u32 v9, v8, s{sT3}")
        a(f"v_mul_u32_u24 v10, {DPR}, v9")
        a("v_sub_u32 v10, v8, v10")
    a("v_lshlrev_b32 v9, 21, v9")
    a(f"v_add_u32 v10, {S}, v10")
    a("v_lshl_add_u32 v9, v10, 15, v9")
    a(f"v_mov_b32 v10, {END}")
    a(f"v_cmp_gt_u32 vcc, {ND}, v8")
    a("v_cndmask_b32 v9, v10, v9, vcc")
    a("v_lshrrev_b32 v18, 8, v9")
    a("v_add_u32 v18, v18, v16")
    a(f"s_lshl_b32 s{sT3}, s{sREM}, 8")
    a(f"v_add_u32 v19, s{sT3}, v17")
    a(f"s_sub_u32 s{sT3}, s{sREM}, {S}")
    a(f"v_add_u32 v10, s{sT3}, v15")
    a("v_lshlrev_b32 v10, 2, v10")
    a(f"v_cmp_gt_u32 vcc, s{sT1}, v15")
    a("s_mov_b64 exec, vcc")
    a(f"buffer_load_dwordx4 v[32:35], v18, s[{sZ}:{sZ+3}], s{sHB} offen nt")
    a(f"buffer_load_dwordx4 v[36:39], v18, s[{sS}:{sS+3}], s{sHB} offen nt")
    a("s_waitcnt vmcnt(0)")
    a(f"ds_write_b128 v19, v[32:35] offset:{L_ZS}")
    a(f"ds_write_b128 v19, v[36:39] offset:{L_ZS+128}")
    a(f"ds_write_b32 v10, v9 offset:{L_Q}")
    a("s_mov_b64 exec, -1")
    a(f"s_add_u32 s{sREM}, s{sREM}, s{sT1}")
    a(f"s_add_u32 s{sT2}, s{sT2}, s{sT1}")
    a(f"s_cmp_le_u32 s{sT2}, {ND}")
    a("s_cbranch_scc1 L_sl")
    a("s_waitcnt lgkmcnt(0)")
    a("L_end:")
    a("s_endpgm")
    a.pad()
    a.check_loop("L_loop")
    txt = HEADER
    txt += f"; @launch grid=(256,1,1) block=({(W_+1)*64},1,1) lds=90112\n"
    txt += '.amdgcn_target "amdgcn-amd-amdhsa--gfx950"\n.text\n'
    txt += f".globl {KN}_kernel\n.p2align 8\n.type {KN}_kernel,@function\n"
    txt += a.text()
    txt += f""".section .rodata,"a"
.p2align 6
.amdhsa_kernel {KN}_kernel
  .amdhsa_next_free_vgpr {NV}
  .amdhsa_next_free_sgpr 80
  .amdhsa_accum_offset {(NV+3)//4*4}
  .amdhsa_group_segment_fixed_size 0
  .amdhsa_kernarg_size 80
  .amdhsa_user_sgpr_count 2
  .amdhsa_user_sgpr_kernarg_segment_ptr 1
  .amdhsa_system_sgpr_workgroup_id_x 1
  .amdhsa_float_denorm_mode_32 3
.end_amdhsa_kernel
"""
    return txt


if __name__ == "__main__":
    out = sys.argv[1]
    kw = {}
    for x in sys.argv[2:]:
        k, v = x.split("=")
        kw[k] = int(v) if v.lstrip("-").isdigit() else v
    open(out, "w").write(gen(**kw))
```

```python
import sys
from asmlib import Asm
from gen_v1 import HEADER, KN


def gen(div=12, ahead=1, S=40, LA=1, pool=0, stamp=0, sleep=8, policy="nt", cstride=4352, light=0, contig=0, ls=0, init=0, dl=0):
    W_ = 4
    UB = 8192
    BB = UB * W_
    BPR = (2 << 20) // BB
    DPR = BPR - S
    ND = DPR * 8
    NIF = 16 * ahead
    END = 0x40000000
    L_PROG = 0
    L_ML = 64
    L_P = 128
    L_O = 1024
    L_Q = 5120
    L_ZS = 8192
    CTR_OFF = 1 << 20
    starts = [0]
    while starts[-1] < ND:
        rem = ND - starts[-1]
        starts.append(starts[-1] + max(1, min(8, -(-rem // div))))
    NCH = len(starts) - 1
    assert NCH <= 62, NCH
    a = Asm()
    VOFF, ZOFF, ADPW, ADA, QRD, PRG, MX, LS = 0, 1, 2, 3, 4, 5, 6, 7
    KZ, KS, Q0, Q1 = 8, 12, 16, 18
    KG = 20
    ZR, SR, TV, B, ACC, AOP = 36, 44, 52, 60, 76, 92
    T0, U0, Sr, Wr, Ur, TT, KP = 36, 40, 42, 50, 52, 54, 55
    LANE = 96
    X0, X1, X2, X3 = 97, 98, 99, 100
    ZRAW = 104
    RING = ZRAW + 8
    NV = RING + 64 * ahead
    sK, sV, sZ, sS = 24, 28, 32, 36
    sMASK, sB0, sEXA, sSCALE, sLOG2E = 40, 42, 44, 46, 47
    sBH, sHB, sSTAT, sREM, sCNT, sGRP = 48, 49, 50, 51, 52, 53
    sT0, sT1, sT2, sT3 = 54, 55, 56, 57
    sOFF = 58
    sZO = 61
    sF0, sF1 = 62, 63
    sST = 64

    a(f"{KN}_kernel:")
    a("s_cmp_ge_u32 s2, 256")
    a("s_cbranch_scc1 L_end2")
    a("s_load_dwordx16 s[4:19], s[0:1], 0")
    a("s_load_dwordx4 s[20:23], s[0:1], 64")
    if stamp or ls:
        a(f"s_memrealtime s[{sST}:{sST+1}]")
    a(f"v_lshrrev_b32 v{X0}, 6, v0")
    a(f"v_and_b32 v{LANE}, 63, v0")
    a(f"v_readfirstlane_b32 s3, v{X0}")
    a(f"s_lshr_b32 s{sBH}, s2, 3")
    a(f"s_mov_b32 s{sLOG2E}, 0x3fb8aa3b")
    a(f"s_cmp_eq_u32 s3, {W_}")
    a("s_cbranch_scc1 L_sched")
    a(f"v_and_b32 v{X0}, 31, v{LANE}")
    a(f"v_lshrrev_b32 v{X1}, 5, v{LANE}")
    a(f"v_lshlrev_b32 v{ZOFF}, 4, v{X1}")
    a(f"s_lshl_b32 s{sT0}, s3, 5")
    a(f"s_add_u32 s{sT0}, s{sT0}, {L_ZS}")
    a(f"v_add_u32 v{ZOFF}, s{sT0}, v{ZOFF}")
    a(f"v_lshlrev_b32 v{VOFF}, 12, v{X1}")
    a(f"v_lshl_add_u32 v{VOFF}, v{X0}, 4, v{VOFF}")
    a(f"v_lshlrev_b32 v{X0}, 3, v{X0}")
    a(f"s_lshl_b32 s{sT0}, s{sBH}, 9")
    a(f"v_add_u32 v{X0}, s{sT0}, v{X0}")
    a(f"v_lshlrev_b32 v101, 4, v{LANE}")
    a("v_add_u32 v102, 0x1000, v101")
    a(f"s_mov_b32 s{sMASK}, 0xffff0000")
    a(f"s_mov_b32 s{sB0}, 0xaaaaaaaa")
    a(f"s_mov_b32 s{sB0+1}, 0xaaaaaaaa")
    a(f"s_mov_b32 s{sEXA}, 0x00f0000f")
    a(f"s_mov_b32 s{sEXA+1}, 0x00f0000f")
    a(f"s_mov_b32 s{sSCALE}, 0x3db504f3")
    a(f"s_lshl_b32 s{sT0}, s3, 13")
    a(f"s_lshl_b32 s{sHB}, s{sBH}, 24")
    a(f"s_add_u32 s{sHB}, s{sHB}, s{sT0}")
    a(f"s_lshl_b32 s{sSTAT}, s2, 21")
    a(f"s_add_u32 s{sSTAT}, s{sSTAT}, s{sT0}")
    a(f"s_lshl_b32 s{sT1}, s3, 7")
    a(f"s_add_u32 s{sT1}, s{sT1}, {L_P}")
    a(f"v_bfe_u32 v{X2}, v{LANE}, 4, 2")
    a(f"v_lshlrev_b32 v{X2}, 5, v{X2}")
    a(f"v_and_b32 v{X3}, 1, v{LANE}")
    a(f"v_lshl_add_u32 v{X2}, v{X3}, 3, v{X2}")
    a(f"v_bfe_u32 v{X3}, v{LANE}, 3, 1")
    a(f"v_lshl_add_u32 v{X2}, v{X3}, 1, v{X2}")
    a(f"v_bfe_u32 v{X3}, v{LANE}, 2, 1")
    a(f"v_lshl_add_u32 v{X2}, v{X3}, 2, v{X2}")
    a(f"v_add_u32 v{ADPW}, s{sT1}, v{X2}")
    a(f"v_and_b32 v{X3}, 3, v{LANE}")
    a(f"v_lshl_add_u32 v{X2}, v{X1}, 2, v{X3}")
    a(f"v_lshlrev_b32 v{X2}, 4, v{X2}")
    a(f"v_add_u32 v{ADA}, s{sT1}, v{X2}")
    a(f"v_mov_b32 v{QRD}, {L_Q}")
    a(f"s_lshl_b32 s{sT1}, s3, 2")
    a(f"v_mov_b32 v{PRG}, s{sT1}")
    a(f"v_mov_b32 v{MX}, 0xff800000")
    a(f"v_mov_b32 v{LS}, 0")
    for k in range(ahead):
        a(f"s_mov_b32 s{sOFF+k}, s{sSTAT}")
        a(f"s_add_u32 s{sSTAT}, s{sSTAT}, {BB}")
    a(f"s_mov_b32 s{sREM}, {S - ahead}")
    a(f"s_mov_b32 s{sCNT}, 0")
    a(f"s_mov_b32 s{sGRP}, 2")
    a("s_waitcnt lgkmcnt(0)")
    a(f"global_load_dwordx2 v[{Q0}:{Q0+1}], v{X0}, s[4:5] nt")
    a(f"global_load_dwordx2 v[{Q1}:{Q1+1}], v{X0}, s[4:5] offset:256 nt")
    a(f"global_load_dwordx2 v[{Sr}:{Sr+1}], v{X0}, s[10:11] nt")
    a(f"global_load_dwordx2 v[{Sr+2}:{Sr+3}], v{X0}, s[10:11] offset:256 nt")
    a(f"global_load_dwordx2 v[{Sr+4}:{Sr+5}], v{X0}, s[12:13] nt")
    a(f"global_load_dwordx2 v[{Sr+6}:{Sr+7}], v{X0}, s[12:13] offset:256 nt")
    for (srd, p, n) in ((sK, 6, 0x20000000), (sV, 8, 0x20000000)):
        a(f"s_mov_b32 s{srd}, s{p}")
        a(f"s_and_b32 s{srd+1}, s{p+1}, 0xffff")
        a(f"s_mov_b32 s{srd+2}, {n}")
        a(f"s_mov_b32 s{srd+3}, 0x00020000")

    def load(ph, kv, j, so):
        r = RING + ph * 64 + kv * 32 + j * 4
        srd = sV if kv else sK
        if contig:
            a(f"buffer_load_dwordx4 v[{r}:{r+3}], v{101 + j//4}, s[{srd}:{srd+3}], s{so} offen offset:{(j%4)*1024} {policy}")
        else:
            a(f"buffer_load_dwordx4 v[{r}:{r+3}], v{VOFF}, s[{srd}:{srd+3}], s{so} offen offset:{j*512} {policy}")

    assert ahead == 1 or dl == 0
    for k in range(ahead):
        for j in range(16 - dl):
            load(k, j // 8, j % 8, sOFF + k)

    def reload(ph, pos, NX):
        sl = pos - dl
        if sl >= 0:
            load(ph, sl // 8, sl % 8, NX)
        else:
            sl += 16
            load(ph, sl // 8, sl % 8, sOFF)
    for i in range(16):
        a(f"v_mov_b32 v{ACC+i}, 0")
    for i in range(4):
        a(f"v_mov_b32 v{AOP+i}, 0")
    a(f"s_waitcnt vmcnt({NIF - dl})")
    for g in range(2):
        for i in range(2):
            a(f"v_lshlrev_b32 v{KG+8*g+4+2*i}, 16, v{Sr+2*g+i}")
            a(f"v_and_b32 v{KG+8*g+4+2*i+1}, s{sMASK}, v{Sr+2*g+i}")
            a(f"v_lshlrev_b32 v{KG+8*g+2*i}, 16, v{Sr+4+2*g+i}")
            a(f"v_and_b32 v{KG+8*g+2*i+1}, s{sMASK}, v{Sr+4+2*g+i}")
    if stamp:
        a(f"s_memrealtime s[{sST+2}:{sST+3}]")
        a("s_waitcnt lgkmcnt(0)")

    a("L_loop:")
    for ph in range(ahead):
        NX = sOFF + ahead
        a(f"s_cmp_ge_u32 s{sOFF}, 0x20000000")
        a("s_cbranch_scc1 L_done")
        a(f"s_add_u32 s{sCNT}, s{sCNT}, 1")
        a(f"v_mov_b32 v{X0}, s{sCNT}")
        a(f"ds_write_b32 v{PRG}, v{X0}")
        a(f"s_cmp_lg_u32 s{sREM}, 0")
        a(f"s_cbranch_scc1 L_st{ph}")
        if ahead > 1:
            a(f"s_cmp_ge_u32 s{sOFF+ahead-1}, 0x20000000")
            a(f"s_cbranch_scc1 L_en{ph}")
        a(f"L_poll{ph}:")
        a(f"ds_read_b32 v{X0}, v{QRD}")
        a("s_waitcnt lgkmcnt(0)")
        a(f"v_readfirstlane_b32 s{sT0}, v{X0}")
        a(f"s_cmp_eq_u32 s{sT0}, -1")
        a(f"s_cbranch_scc1 L_poll{ph}")
        a(f"v_add_u32 v{QRD}, 4, v{QRD}")
        a(f"s_add_u32 s{NX}, s{sT0}, s{sHB}")
        a(f"s_branch L_nx{ph}")
        if ahead > 1:
            a(f"L_en{ph}:")
            a(f"s_mov_b32 s{NX}, {END}")
            a(f"s_branch L_nx{ph}")
        a(f"L_st{ph}:")
        a(f"s_mov_b32 s{NX}, s{sSTAT}")
        a(f"s_add_u32 s{sSTAT}, s{sSTAT}, {BB}")
        a(f"s_sub_u32 s{sREM}, s{sREM}, 1")
        a(f"L_nx{ph}:")
        a(f"s_bfe_u32 s{sT0}, s{sOFF}, 0x10017")
        a(f"s_cmp_eq_u32 s{sT0}, s{sGRP}")
        a(f"s_cbranch_scc1 L_gok{ph}")
        a(f"s_mov_b32 s{sGRP}, s{sT0}")
        a(f"s_cmp_eq_u32 s{sT0}, 0")
        a(f"s_cbranch_scc1 L_g0{ph}")
        for i in range(8):
            a(f"v_mov_b32 v{KZ+i}, v{KG+8+i}")
        a(f"s_branch L_gok{ph}")
        a(f"L_g0{ph}:")
        for i in range(8):
            a(f"v_mov_b32 v{KZ+i}, v{KG+i}")
        a(f"L_gok{ph}:")
        for st in range(2):
            for jl in range(4):
                j = st * 4 + jl
                r = RING + ph * 64 + j * 4
                a(f"s_waitcnt vmcnt({NIF-1-dl})")
                if dl:
                    reload(ph, j, NX)
                for e in range(4):
                    a(f"v_cvt_f32_i32 v{T0+e}, v{r+e}")
                if not dl:
                    reload(ph, j, NX)
                a(f"v_pk_add_f32 v[{T0}:{T0+1}], v[{T0}:{T0+1}], v[{KZ}:{KZ+1}] neg_lo:[0,1] neg_hi:[0,1]")
                a(f"v_pk_add_f32 v[{T0+2}:{T0+3}], v[{T0+2}:{T0+3}], v[{KZ+2}:{KZ+3}] neg_lo:[0,1] neg_hi:[0,1]")
                if not light:
                    a(f"v_cvt_pk_bf16_f32 v{U0}, v{T0}, v{T0+1}")
                    a(f"v_cvt_pk_bf16_f32 v{U0+1}, v{T0+2}, v{T0+3}")
                    a(f"v_lshlrev_b32 v{T0}, 16, v{U0}")
                    a(f"v_and_b32 v{T0+1}, s{sMASK}, v{U0}")
                    a(f"v_lshlrev_b32 v{T0+2}, 16, v{U0+1}")
                    a(f"v_and_b32 v{T0+3}, s{sMASK}, v{U0+1}")
                a(f"v_pk_mul_f32 v[{T0}:{T0+1}], v[{T0}:{T0+1}], v[{KS}:{KS+1}]")
                a(f"v_pk_mul_f32 v[{T0+2}:{T0+3}], v[{T0+2}:{T0+3}], v[{KS+2}:{KS+3}]")
                a(f"v_cvt_pk_bf16_f32 v{U0}, v{T0}, v{T0+1}")
                a(f"v_cvt_pk_bf16_f32 v{U0+1}, v{T0+2}, v{T0+3}")
                s0, s1 = Sr + jl * 2, Sr + jl * 2 + 1
                a(f"v_dot2_f32_bf16 v{s0}, v{U0}, v{Q0}, 0")
                a(f"v_dot2_f32_bf16 v{s1}, v{U0}, v{Q1}, 0")
                a(f"v_dot2_f32_bf16 v{s0}, v{U0+1}, v{Q0+1}, v{s0}")
                a(f"v_dot2_f32_bf16 v{s1}, v{U0+1}, v{Q1+1}, v{s1}")
            for jl in range(4):
                a(f"v_permlane16_swap_b32 v{Sr+jl*2}, v{Sr+jl*2+1}")
            for jl in range(4):
                a(f"v_add_f32 v{Sr+jl*2}, v{Sr+jl*2}, v{Sr+jl*2+1}")
            a(f"v_add_f32_dpp v{Wr}, v{Sr}, v{Sr} row_mirror row_mask:0xf bank_mask:0x3")
            a(f"v_add_f32_dpp v{Wr+1}, v{Sr+4}, v{Sr+4} row_mirror row_mask:0xf bank_mask:0x3")
            a(f"v_add_f32_dpp v{Wr}, v{Sr+2}, v{Sr+2} row_mirror row_mask:0xf bank_mask:0xc")
            a(f"v_add_f32_dpp v{Wr+1}, v{Sr+6}, v{Sr+6} row_mirror row_mask:0xf bank_mask:0xc")
            a(f"v_add_f32_dpp v{Ur+st}, v{Wr}, v{Wr} row_half_mirror row_mask:0xf bank_mask:0x5")
            a(f"v_add_f32_dpp v{Ur+st}, v{Wr+1}, v{Wr+1} row_half_mirror row_mask:0xf bank_mask:0xa")
        if ph == 0:
            a(f"s_cmp_lg_u32 s{sCNT}, 1")
            a("s_cbranch_scc1 L_nobar")
            a("s_barrier")
            a("L_nobar:")
        a(f"ds_read_b128 v[{ZRAW}:{ZRAW+3}], v{ZOFF}")
        a(f"ds_read_b128 v[{ZRAW+4}:{ZRAW+7}], v{ZOFF} offset:128")
        a(f"v_add_u32 v{ZOFF}, 0x100, v{ZOFF}")
        a(f"v_cndmask_b32 v{TT}, v{Ur+1}, v{Ur}, s[{sB0}:{sB0+1}]")
        a(f"v_cndmask_b32 v{KP}, v{Ur}, v{Ur+1}, s[{sB0}:{sB0+1}]")
        a(f"v_add_f32_dpp v{Wr}, v{TT}, v{KP} quad_perm:[1,0,3,2] row_mask:0xf bank_mask:0xf")
        a(f"v_add_f32_dpp v{Wr}, v{Wr}, v{Wr} quad_perm:[2,3,0,1] row_mask:0xf bank_mask:0xf")
        a(f"v_cvt_pk_bf16_f32 v{Wr}, v{Wr}, v{Wr}")
        a(f"v_lshlrev_b32 v{Wr}, 16, v{Wr}")
        a(f"v_mul_f32 v{Wr}, s{sSCALE}, v{Wr}")
        a(f"v_cvt_pk_bf16_f32 v{Wr}, v{Wr}, v{Wr}")
        a(f"v_lshlrev_b32 v{Wr}, 16, v{Wr}")
        a(f"v_cmp_gt_f32 vcc, v{Wr}, v{MX}")
        a("s_nop 1")
        a(f"s_cbranch_vccz L_nomax{ph}")
        a(f"v_max_f32_dpp v{TT}, v{Wr}, v{Wr} quad_perm:[1,0,3,2] row_mask:0xf bank_mask:0xf")
        a(f"v_max_f32_dpp v{TT}, v{TT}, v{TT} row_half_mirror row_mask:0xf bank_mask:0xf")
        a(f"v_max_f32_dpp v{TT}, v{TT}, v{TT} row_mirror row_mask:0xf bank_mask:0xf")
        a(f"v_mov_b32 v{KP}, v{TT}")
        a(f"v_permlane32_swap_b32 v{TT}, v{KP}")
        a(f"v_max3_f32 v{TT}, v{TT}, v{KP}, v{MX}")
        a(f"v_sub_f32 v{KP}, v{MX}, v{TT}")
        a(f"v_mul_f32 v{KP}, s{sLOG2E}, v{KP}")
        a(f"v_exp_f32 v{KP}, v{KP}")
        a(f"v_mov_b32 v{MX}, v{TT}")
        a(f"v_mul_f32 v{LS}, v{LS}, v{KP}")
        a(f"v_readlane_b32 s{sF0}, v{KP}, 0")
        a(f"v_readlane_b32 s{sF1}, v{KP}, 16")
        for e in range(4):
            a(f"v_mul_f32 v{ACC+4*e}, s{sF0}, v{ACC+4*e}")
            a(f"v_mul_f32 v{ACC+4*e+1}, s{sF0}, v{ACC+4*e+1}")
            a(f"v_mul_f32 v{ACC+4*e+2}, s{sF1}, v{ACC+4*e+2}")
            a(f"v_mul_f32 v{ACC+4*e+3}, s{sF1}, v{ACC+4*e+3}")
        a(f"L_nomax{ph}:")
        a(f"v_sub_f32 v{Wr}, v{Wr}, v{MX}")
        a(f"v_mul_f32 v{Wr}, s{sLOG2E}, v{Wr}")
        a(f"v_exp_f32 v{Wr}, v{Wr}")
        a(f"v_add_f32 v{LS}, v{LS}, v{Wr}")
        a(f"v_cvt_pk_bf16_f32 v{TT}, v{Wr}, v{Wr}")
        a(f"v_lshlrev_b32 v{TT}, 16, v{TT}")
        a(f"v_sub_f32 v{TT}, v{Wr}, v{TT}")
        a(f"v_cvt_pk_bf16_f32 v{TT}, v{Wr}, v{TT}")
        a(f"ds_write_b16 v{ADPW}, v{TT}")
        a(f"ds_write_b16_d16_hi v{ADPW}, v{TT} offset:16")
        a(f"s_mov_b64 exec, s[{sEXA}:{sEXA+1}]")
        a(f"ds_read_b128 v[{AOP}:{AOP+3}], v{ADA}")
        a("s_mov_b64 exec, -1")
        zr = ZRAW
        a("s_waitcnt lgkmcnt(3)")
        for i in range(4):
            a(f"v_lshlrev_b32 v{ZR+2*i}, 16, v{zr+i}")
            a(f"v_and_b32 v{ZR+2*i+1}, s{sMASK}, v{zr+i}")
            a(f"v_lshlrev_b32 v{SR+2*i}, 16, v{zr+4+i}")
            a(f"v_and_b32 v{SR+2*i+1}, s{sMASK}, v{zr+4+i}")
        for jj in range(4):
            for k in range(2):
                j = jj * 2 + k
                r = RING + ph * 64 + 32 + j * 4
                a(f"s_waitcnt vmcnt({NIF-1-dl})")
                if dl:
                    reload(ph, 8 + j, NX)
                for e in range(4):
                    a(f"v_cvt_f32_i32 v{TV+2*e+k}, v{r+e}")
                if not dl:
                    reload(ph, 8 + j, NX)
            z = ZR + 2 * jj
            sc = SR + 2 * jj
            for e in range(4):
                t = TV + 2 * e
                a(f"v_pk_add_f32 v[{t}:{t+1}], v[{t}:{t+1}], v[{z}:{z+1}] neg_lo:[0,1] neg_hi:[0,1]")
            for e in range(4 if not light else 0):
                t = TV + 2 * e
                a(f"v_cvt_pk_bf16_f32 v{B+4*e+jj}, v{t}, v{t+1}")
            for e in range(4 if not light else 0):
                t = TV + 2 * e
                a(f"v_lshlrev_b32 v{t}, 16, v{B+4*e+jj}")
                a(f"v_and_b32 v{t+1}, s{sMASK}, v{B+4*e+jj}")
            for e in range(4):
                t = TV + 2 * e
                a(f"v_pk_mul_f32 v[{t}:{t+1}], v[{t}:{t+1}], v[{sc}:{sc+1}]")
            for e in range(4):
                t = TV + 2 * e
                a(f"v_cvt_pk_bf16_f32 v{B+4*e+jj}, v{t}, v{t+1}")
        a("s_waitcnt lgkmcnt(0)")
        for e in range(4):
            a(f"v_mfma_f32_16x16x32_bf16 v[{ACC+4*e}:{ACC+4*e+3}], v[{AOP}:{AOP+3}], v[{B+4*e}:{B+4*e+3}], v[{ACC+4*e}:{ACC+4*e+3}]")
        for j in range(ahead):
            a(f"s_mov_b32 s{sOFF+j}, s{sOFF+j+1}")
    a("s_branch L_loop")

    a("L_done:")
    a("s_nop 7")
    a(f"v_add_f32_dpp v{LS}, v{LS}, v{LS} quad_perm:[1,0,3,2] row_mask:0xf bank_mask:0xf")
    a(f"v_add_f32_dpp v{LS}, v{LS}, v{LS} row_half_mirror row_mask:0xf bank_mask:0xf")
    a(f"v_add_f32_dpp v{LS}, v{LS}, v{LS} row_mirror row_mask:0xf bank_mask:0xf")
    a(f"v_mov_b32 v{X0}, v{LS}")
    a(f"v_permlane32_swap_b32 v{LS}, v{X0}")
    a(f"v_add_f32 v{LS}, v{LS}, v{X0}")
    a(f"v_bfe_u32 v{X0}, v{LANE}, 4, 1")
    a(f"v_lshl_add_u32 v{X0}, v{X0}, 4, v{PRG}")
    a(f"ds_write_b32 v{X0}, v{MX} offset:{L_ML}")
    a(f"ds_write_b32 v{X0}, v{LS} offset:{L_ML+32}")
    for e in range(4):
        a(f"v_add_f32 v{8+e}, v{ACC+4*e}, v{ACC+4*e+1}")
        a(f"v_add_f32 v{12+e}, v{ACC+4*e+2}, v{ACC+4*e+3}")
    a(f"v_lshlrev_b32 v{X1}, 4, v{LANE}")
    a(f"s_lshl_b32 s{sT0}, s3, 10")
    a(f"v_add_u32 v{X0}, s{sT0}, v{X1}")
    a("s_mov_b32 exec_hi, 0")
    a(f"ds_write_b128 v{X0}, v[8:11] offset:{L_O}")
    a(f"ds_write_b128 v{X0}, v[12:15] offset:{L_O+512}")
    a("s_mov_b64 exec, -1")
    a("s_waitcnt lgkmcnt(0)")
    if stamp:
        a(f"s_memrealtime s[{sST+6}:{sST+7}]")
        a("s_waitcnt lgkmcnt(0)")
        a("s_waitcnt vmcnt(0)")
        a(f"s_mov_b32 s{sST+4}, s{sCNT}")
        a(f"s_mov_b32 s{sST+5}, 0")
        for i in range(8):
            a(f"v_mov_b32 v{20+i}, s{sST+i}")
        a(f"s_lshl_b32 s{sT0}, s2, 2")
        a(f"s_add_u32 s{sT0}, s{sT0}, s3")
        a(f"s_lshl_b32 s{sT0}, s{sT0}, 5")
        a(f"s_add_u32 s{sT0}, s{sT0}, 0x200000")
        a(f"v_mov_b32 v28, s{sT0}")
        a("s_mov_b64 exec, 1")
        a("global_store_dwordx4 v28, v[20:23], s[22:23]")
        a("global_store_dwordx4 v28, v[24:27], s[22:23] offset:16")
        a("s_mov_b64 exec, -1")
    a("s_barrier")
    if stamp:
        a(f"s_memrealtime s[{sST}:{sST+1}]")
        a("s_waitcnt lgkmcnt(0)")
    a("s_cmp_lg_u32 s3, 0")
    a("s_cbranch_scc1 L_end")
    OB = 32
    a(f"v_lshrrev_b32 v8, 5, v{LANE}")
    a("v_lshlrev_b32 v8, 4, v8")
    a(f"ds_read_b128 v[16:19], v8 offset:{L_ML}")
    a(f"ds_read_b128 v[20:23], v8 offset:{L_ML+32}")
    for w in range(4):
        a(f"ds_read_b128 v[{OB+4*w}:{OB+4*w+3}], v{X1} offset:{L_O+w*1024}")
    a("s_mov_b32 s24, s22")
    a("s_and_b32 s25, s23, 0xffff")
    a(f"s_mov_b32 s26, {256*2048}")
    a("s_mov_b32 s27, 0x00020000")
    a(f"s_lshl_b32 s{sT0}, s2, 11")
    a(f"v_lshrrev_b32 v9, 1, v{X1}")
    a("s_waitcnt lgkmcnt(4)")
    a("v_max3_f32 v10, v16, v17, v18")
    a("v_max_f32 v10, v10, v19")
    for i in range(4):
        a(f"v_sub_f32 v{16+i}, v{16+i}, v10")
    for i in range(4):
        a(f"v_mul_f32 v{16+i}, s{sLOG2E}, v{16+i}")
    for i in range(4):
        a(f"v_exp_f32 v{16+i}, v{16+i}")
    a("v_mul_f32 v11, v16, v20")
    for i in range(1, 4):
        a(f"v_fmac_f32 v11, v{16+i}, v{20+i}")
    a("s_waitcnt lgkmcnt(0)")
    for e in range(4):
        a(f"v_mul_f32 v{12+e}, v16, v{OB+e}")
    for w in range(1, 4):
        for e in range(4):
            a(f"v_fmac_f32 v{12+e}, v{16+w}, v{OB+4*w+e}")
    a(f"buffer_store_dwordx4 v[12:15], v{X1}, s[24:27], s{sT0} offen sc1")
    a(f"buffer_store_dwordx2 v[10:11], v9, s[24:27], s{sT0} offen offset:1024 sc1")
    a(f"s_lshl_b32 s{sT1}, s{sBH}, 3")
    a(f"v_mov_b32 v16, s{sT1}")
    a("v_mov_b32 v17, 1")
    a("s_waitcnt vmcnt(0)")
    a("s_mov_b64 exec, 1")
    a("global_atomic_add v18, v16, v17, s[20:21] offset:4 sc0")
    a("s_waitcnt vmcnt(0)")
    a(f"v_readfirstlane_b32 s{sT2}, v18")
    a("s_mov_b64 exec, -1")
    if stamp:
        a(f"s_memrealtime s[{sST+2}:{sST+3}]")
        a("s_waitcnt lgkmcnt(0)")
        for i in range(4):
            a(f"v_mov_b32 v{20+i}, s{sST+i}")
        a(f"s_lshl_b32 s{sT3}, s2, 4")
        a(f"s_add_u32 s{sT3}, s{sT3}, 0x180000")
        a(f"v_mov_b32 v24, s{sT3}")
        a("s_mov_b64 exec, 1")
        a("global_store_dwordx4 v24, v[20:23], s[22:23]")
        a("s_mov_b64 exec, -1")
    a(f"s_cmp_lg_u32 s{sT2}, 7")
    a("s_cbranch_scc1 L_end")
    a(f"s_lshl_b32 s{sT0}, s{sBH}, 14")
    for p in range(8):
        a(f"buffer_load_dwordx2 v[{16+2*p}:{17+2*p}], v9, s[24:27], s{sT0} offen offset:1024 sc1")
        a(f"buffer_load_dwordx4 v[{OB+4*p}:{OB+4*p+3}], v{X1}, s[24:27], s{sT0} offen sc1")
        if p < 7:
            a(f"s_add_u32 s{sT0}, s{sT0}, 2048")
    a("s_mov_b32 s28, s18")
    a("s_and_b32 s29, s19, 0xffff")
    a("s_mov_b32 s30, 16384")
    a("s_mov_b32 s31, 0x00020000")
    a(f"s_lshl_b32 s{sT1}, s{sBH}, 9")
    a("s_waitcnt vmcnt(0)")
    a("v_max3_f32 v10, v16, v18, v20")
    a("v_max3_f32 v10, v10, v22, v24")
    a("v_max3_f32 v10, v10, v26, v28")
    a("v_max_f32 v10, v10, v30")
    for p in range(8):
        a(f"v_sub_f32 v{16+2*p}, v{16+2*p}, v10")
    for p in range(8):
        a(f"v_mul_f32 v{16+2*p}, s{sLOG2E}, v{16+2*p}")
    for p in range(8):
        a(f"v_exp_f32 v{16+2*p}, v{16+2*p}")
    a("v_mul_f32 v11, v16, v17")
    for p in range(1, 8):
        a(f"v_fmac_f32 v11, v{16+2*p}, v{17+2*p}")
    for e in range(4):
        a(f"v_mul_f32 v{12+e}, v16, v{OB+e}")
    for p in range(1, 8):
        for e in range(4):
            a(f"v_fmac_f32 v{12+e}, v{16+2*p}, v{OB+4*p+e}")
    a("v_rcp_f32 v11, v11")
    for e in range(4):
        a(f"v_mul_f32 v{12+e}, v{12+e}, v11")
    a("v_cvt_pk_bf16_f32 v12, v12, v13")
    a("v_cvt_pk_bf16_f32 v13, v14, v15")
    a(f"buffer_store_dwordx2 v[12:13], v9, s[28:31], s{sT1} offen")
    if stamp or ls:
        a("s_waitcnt vmcnt(0)")
        a(f"s_memrealtime s[{sST+2}:{sST+3}]")
        a("s_waitcnt lgkmcnt(0)")
        a(f"v_mov_b32 v20, s{sST+2}")
        a(f"v_mov_b32 v21, s{sST+3}")
        a(f"s_lshl_b32 s{sT3}, s{sBH}, 3")
        a(f"s_add_u32 s{sT3}, s{sT3}, 0x300000")
        a(f"v_mov_b32 v24, s{sT3}")
        a("s_mov_b64 exec, 1")
        a("global_store_dwordx2 v24, v[20:21], s[22:23]")
    a("s_endpgm")

    a("L_sched:")
    a(f"v_lshlrev_b32 v2, 2, v{LANE}")
    a("v_mov_b32 v3, -1")
    a("v_mov_b32 v4, 0")
    nq = (ND + 63) // 64 + 1
    for i in range(nq):
        a(f"ds_write_b32 v2, v3 offset:{L_Q + i*256}")
    a("s_mov_b64 exec, 0xffff")
    a("ds_write_b32 v2, v4")
    a("s_mov_b64 exec, -1")
    a(f"s_lshl_b32 s{sT0}, s{sBH}, 3")
    a(f"v_mov_b32 v5, s{sT0}")
    a(f"s_mul_i32 s{sT0}, s{sBH}, {cstride}")
    a(f"s_add_u32 s{sT0}, s{sT0}, {CTR_OFF}")
    a(f"v_mov_b32 v6, s{sT0}")
    a("v_mov_b32 v12, 1")
    a(f"v_lshlrev_b32 v14, 4, v{LANE}")
    a(f"v_lshrrev_b32 v15, 3, v{LANE}")
    a(f"v_and_b32 v16, 7, v{LANE}")
    a("v_lshlrev_b32 v16, 4, v16")
    a("v_lshl_add_u32 v17, v15, 8, v16")
    a("s_waitcnt lgkmcnt(0)")
    for (srd, p) in ((sZ, 16), (sS, 14)):
        a(f"s_mov_b32 s{srd}, s{p}")
        a(f"s_and_b32 s{srd+1}, s{p+1}, 0xffff")
        a(f"s_mov_b32 s{srd+2}, 0x200000")
        a(f"s_mov_b32 s{srd+3}, 0x00020000")
    a(f"s_lshl_b32 s{sT0}, s2, 13")
    nst = (S + 7) // 8
    for i in range(nst):
        a(f"buffer_load_dwordx4 v[{32+8*i}:{35+8*i}], v14, s[{sZ}:{sZ+3}], s{sT0} offen nt")
        a(f"buffer_load_dwordx4 v[{36+8*i}:{39+8*i}], v14, s[{sS}:{sS+3}], s{sT0} offen nt")
        if i < nst - 1:
            a(f"s_add_u32 s{sT0}, s{sT0}, 1024")
    for i in range(nst):
        a(f"s_waitcnt vmcnt({2*(nst-1-i)})")
        a(f"ds_write_b128 v17, v[{32+8*i}:{35+8*i}] offset:{L_ZS + i*2048}")
        a(f"ds_write_b128 v17, v[{36+8*i}:{39+8*i}] offset:{L_ZS + i*2048 + 128}")
    a(f"s_lshl_b32 s{sHB}, s{sBH}, 16")
    a(f"v_add_u32 v20, {ND - NCH}, v{LANE}")
    for c in range(NCH):
        if starts[c] != ND - NCH + c:
            a(f"s_movk_i32 s{sT1}, {starts[c]}")
            a(f"v_writelane_b32 v20, s{sT1}, {c}")
    a("s_waitcnt lgkmcnt(0)")
    a("s_barrier")
    a("s_mov_b64 exec, 1")
    if ls:
        a(f"v_mov_b32 v36, s{sST}")
        a(f"v_mov_b32 v37, s{sST+1}")
        a(f"s_lshl_b32 s{sT3}, s2, 3")
        a(f"s_add_u32 s{sT3}, s{sT3}, 0x180000")
        a(f"v_mov_b32 v38, s{sT3}")
        a("global_store_dwordx2 v38, v[36:37], s[22:23]")
    if init:
        a(f"s_and_b32 s{sGRP}, s2, 7")
        a("s_cbranch_scc1 L_early")
        a("global_atomic_swap v13, v6, v4, s[22:23] sc0")
        a("s_waitcnt vmcnt(0)")
        a("global_store_dword v5, v12, s[20:21] sc1")
    else:
        a("global_atomic_add v13, v5, v12, s[20:21] sc0")
        a("s_waitcnt vmcnt(0)")
        a(f"v_readfirstlane_b32 s{sT0}, v13")
        a(f"s_cmp_lg_u32 s{sT0}, 0")
        a("s_cbranch_scc1 L_wait")
        a("global_atomic_swap v13, v6, v4, s[22:23] sc0")
        a("s_waitcnt vmcnt(0)")
        a("v_mov_b32 v12, 0x10000")
        a("global_atomic_add v13, v5, v12, s[20:21] sc0")
        a("s_waitcnt vmcnt(0)")
        a("s_branch L_ready")
        a("L_wait:")
        a(f"s_cmp_ge_u32 s{sT0}, 0x10000")
        a("s_cbranch_scc1 L_ready")
        a("s_sleep 127")
        a("global_load_dword v13, v5, s[20:21] sc1")
        a("s_waitcnt vmcnt(0)")
        a(f"v_readfirstlane_b32 s{sT0}, v13")
        a("s_branch L_wait")
    if init:
        a("s_branch L_ready")
        a("L_early:")
        a("s_sleep 127")
        a("ds_read_b32 v8, v4")
        a("s_waitcnt lgkmcnt(0)")
        a(f"v_readfirstlane_b32 s{sT0}, v8")
        a(f"s_cmp_lt_u32 s{sT0}, 8")
        a("s_cbranch_scc1 L_early")
        a("global_load_dword v13, v5, s[20:21] sc1")
        a("s_waitcnt vmcnt(0)")
        a(f"v_readfirstlane_b32 s{sT0}, v13")
        a(f"s_cmp_eq_u32 s{sT0}, 0")
        a(f"s_cselect_b32 s{sGRP}, 1, 0")
    a("L_ready:")
    a("s_mov_b64 exec, -1")
    a(f"s_mov_b32 s{sREM}, {S}")
    a("L_sl:")
    a("ds_read_b128 v[8:11], v4")
    a("s_waitcnt lgkmcnt(0)")
    a("v_max_u32 v8, v8, v9")
    a("v_max3_u32 v8, v8, v10, v11")
    a(f"v_readfirstlane_b32 s{sT0}, v8")
    a(f"s_add_u32 s{sT0}, s{sT0}, {ahead + LA}")
    a(f"s_cmp_gt_u32 s{sT0}, s{sREM}")
    a("s_cbranch_scc1 L_claim")
    a(f"s_sleep {sleep}")
    a("s_branch L_sl")
    a("L_claim:")
    a("v_mov_b32 v12, 1")
    a("s_mov_b64 exec, 1")
    if init:
        a(f"s_cmp_eq_u32 s{sGRP}, 0")
        a("s_cbranch_scc1 L_cl2")
        a("global_load_dword v13, v5, s[20:21] sc1")
        a("s_waitcnt vmcnt(0)")
        a(f"v_readfirstlane_b32 s{sT0}, v13")
        a(f"s_mov_b32 s{sGRP}, 0")
        a(f"s_mov_b32 s{sT3}, {NCH}")
        a(f"s_cmp_eq_u32 s{sT0}, 0")
        a("s_cbranch_scc1 L_cl3")
        a("L_cl2:")
    a("global_atomic_add v13, v6, v12, s[22:23] sc0")
    a("s_waitcnt vmcnt(0)")
    a(f"v_readfirstlane_b32 s{sT3}, v13")
    if init:
        a("L_cl3:")
    a("s_mov_b64 exec, -1")
    a(f"s_min_u32 s{sT3}, s{sT3}, {NCH}")
    a(f"v_readlane_b32 s{sT2}, v20, s{sT3}")
    a(f"s_add_u32 s{sT3}, s{sT3}, 1")
    a(f"v_readlane_b32 s{sT1}, v20, s{sT3}")
    a(f"s_sub_u32 s{sT1}, s{sT1}, s{sT2}")
    a(f"v_add_u32 v8, s{sT2}, v15")
    if pool == 0:
        a("v_and_b32 v9, 7, v8")
        a("v_lshrrev_b32 v10, 3, v8")
    else:
        magic = (1 << 32) // DPR + 1
        a(f"s_mov_b32 s{sT3}, {magic}")
        a(f"v_mul_hi_u32 v9, v8, s{sT3}")
        a(f"v_mul_u32_u24 v10, {DPR}, v9")
        a("v_sub_u32 v10, v8, v10")
    a("v_lshlrev_b32 v9, 21, v9")
    a(f"v_add_u32 v10, {S}, v10")
    a("v_lshl_add_u32 v9, v10, 15, v9")
    a(f"v_mov_b32 v10, {END}")
    a(f"v_cmp_gt_u32 vcc, {ND}, v8")
    a("v_cndmask_b32 v9, v10, v9, vcc")
    a("v_lshrrev_b32 v18, 8, v9")
    a("v_add_u32 v18, v18, v16")
    a(f"s_lshl_b32 s{sT3}, s{sREM}, 8")
    a(f"v_add_u32 v19, s{sT3}, v17")
    a(f"s_sub_u32 s{sT3}, s{sREM}, {S}")
    a(f"v_add_u32 v10, s{sT3}, v15")
    a("v_lshlrev_b32 v10, 2, v10")
    a(f"v_cmp_gt_u32 vcc, s{sT1}, v15")
    a("s_mov_b64 exec, vcc")
    a(f"buffer_load_dwordx4 v[32:35], v18, s[{sZ}:{sZ+3}], s{sHB} offen nt")
    a(f"buffer_load_dwordx4 v[36:39], v18, s[{sS}:{sS+3}], s{sHB} offen nt")
    a("s_waitcnt vmcnt(0)")
    a(f"ds_write_b128 v19, v[32:35] offset:{L_ZS}")
    a(f"ds_write_b128 v19, v[36:39] offset:{L_ZS+128}")
    a(f"ds_write_b32 v10, v9 offset:{L_Q}")
    a("s_mov_b64 exec, -1")
    a(f"s_add_u32 s{sREM}, s{sREM}, s{sT1}")
    a(f"s_add_u32 s{sT2}, s{sT2}, s{sT1}")
    a(f"s_cmp_le_u32 s{sT2}, {ND}")
    a("s_cbranch_scc1 L_sl")
    a("s_waitcnt lgkmcnt(0)")
    a("L_end:")
    if ls:
        a("s_waitcnt vmcnt(0) lgkmcnt(0)")
        a(f"s_memrealtime s[{sST+2}:{sST+3}]")
        a("s_waitcnt lgkmcnt(0)")
        a(f"v_mov_b32 v20, s{sST+2}")
        a(f"v_mov_b32 v21, s{sST+3}")
        a(f"s_lshl_b32 s{sT3}, s2, 3")
        a(f"s_add_u32 s{sT3}, s{sT3}, s3")
        a(f"s_lshl_b32 s{sT3}, s{sT3}, 3")
        a(f"s_add_u32 s{sT3}, s{sT3}, 0x380000")
        a(f"v_mov_b32 v24, s{sT3}")
        a("s_mov_b64 exec, 1")
        a("global_store_dwordx2 v24, v[20:21], s[22:23]")
    a("L_end2:")
    a("s_endpgm")
    a.pad()
    a.check_loop("L_loop")
    txt = HEADER
    txt += f"; @launch grid=(256,1,1) block=({(W_+1)*64},1,1) lds=90112\n"
    txt += '.amdgcn_target "amdgcn-amd-amdhsa--gfx950"\n.text\n'
    txt += f".globl {KN}_kernel\n.p2align 8\n.type {KN}_kernel,@function\n"
    txt += a.text()
    txt += f""".section .rodata,"a"
.p2align 6
.amdhsa_kernel {KN}_kernel
  .amdhsa_next_free_vgpr {NV}
  .amdhsa_next_free_sgpr 80
  .amdhsa_accum_offset {(NV+3)//4*4}
  .amdhsa_group_segment_fixed_size 0
  .amdhsa_kernarg_size 80
  .amdhsa_user_sgpr_count 2
  .amdhsa_user_sgpr_kernarg_segment_ptr 1
  .amdhsa_system_sgpr_workgroup_id_x 1
  .amdhsa_float_denorm_mode_32 3
.end_amdhsa_kernel
"""
    return txt


if __name__ == "__main__":
    out = sys.argv[1]
    kw = {}
    for x in sys.argv[2:]:
        k, v = x.split("=")
        kw[k] = int(v) if v.lstrip("-").isdigit() else v
    open(out, "w").write(gen(**kw))
```
